```python
import torch

def _softmax(x, axis=-1):
    return torch.softmax(x, dim=axis)
def _gelu(x):
    return torch.nn.functional.gelu(x, approximate="tanh")
def _silu(x):
    return torch.nn.functional.silu(x)
def _sigmoid(x):
    return torch.sigmoid(x)
def _layernorm(x, axis=-1, eps=1e-5):
    m = x.mean(dim=axis, keepdim=True)
    v = x.var(dim=axis, keepdim=True, unbiased=False)
    return (x - m) / torch.sqrt(v + eps)
def _scatter_add(tgt, idx, src, axis=0):
    return tgt.clone().index_add_(axis, idx, src)
def _segment_sum(src, seg, n):
    out = torch.zeros((n,) + src.shape[1:], dtype=src.dtype)
    return out.index_add_(0, seg, src)
def _pad(x, pw):
    flat = tuple(v for pair in reversed(pw) for v in pair)
    return torch.nn.functional.pad(x, flat)

kernel_name = 'standalone__gqa_softmax__near_ridge'

def setup_inputs():

    _w = (lambda a: (lambda t: t.to(torch.bfloat16) if t.is_floating_point() else t)(torch.as_tensor(a)))
    B, Hq, Hkv, Sq, Sk, D = 32, 32, 32, 192, 512, 128
    return {
        "q": _w((lambda *s: torch.randn(*s, dtype=torch.bfloat16) * 0.8)(B, Hq, Sq, D)),
        "k": _w((lambda *s: torch.randn(*s, dtype=torch.bfloat16) * 0.8)(B, Hkv, Sk, D)),
        "v": _w((lambda *s: torch.randn(*s, dtype=torch.bfloat16) * 0.05)(B, Hkv, Sk, D)),
    }

def reference(q, k, v):
    B, Hq, Sq, D = q.shape
    Hkv = k.shape[1]
    rep = Hq // Hkv
    k = (lambda x, n, axis: torch.repeat_interleave(x, n, dim=axis))(k, rep, axis=1)
    v = (lambda x, n, axis: torch.repeat_interleave(x, n, dim=axis))(v, rep, axis=1)
    scale = D ** -0.5
    scores = torch.einsum("bhqd,bhkd->bhqk", q, k) * scale
    p = _softmax(scores, axis=-1)
    return torch.einsum("bhqk,bhkd->bhqd", p, v)
```

```python
import re

_REG_RE = re.compile(r'^(-|abs\()?([vsa])(\d+)\)?$')
_RNG_RE = re.compile(r'^(-)?([vsa])\[(\d+):(\d+)\]$')


def regs_of(op):
    op = op.strip()
    m = _REG_RE.match(op)
    if m:
        return {(m.group(2), int(m.group(3)))}
    m = _RNG_RE.match(op)
    if m:
        return {(m.group(2), i) for i in range(int(m.group(3)), int(m.group(4)) + 1)}
    if op in ('m0', 'vcc', 'exec', 'scc'):
        return {(op, 0)}
    return set()


TRANS = ('v_exp_f32', 'v_log_f32', 'v_rcp_f32', 'v_rsq_f32', 'v_sqrt_f32', 'v_sin_f32', 'v_cos_f32')


class Inst:
    def __init__(self, text, comment=None):
        self.text = text
        self.comment = comment
        self.label = None
        self.reads = set()
        self.writes = set()
        self.kind = 'other'
        self.srcC = set()
        self.srcAB = set()
        self.ws = 1
        t = text.strip()
        if t.endswith(':'):
            self.kind = 'label'
            self.ws = 0
            return
        if t.startswith(';') or t.startswith('.') or t == '':
            self.kind = 'directive'
            self.ws = 0
            return
        parts = t.split(None, 1)
        self.op = parts[0]
        rest = parts[1] if len(parts) > 1 else ''
        ops = [o.strip() for o in rest.split(',')] if rest else []
        fixed = []
        depth = 0
        cur = ''
        for ch in rest:
            if ch == '[':
                depth += 1
            if ch == ']':
                depth -= 1
            if ch == ',' and depth == 0:
                fixed.append(cur.strip())
                cur = ''
            else:
                cur += ch
        if cur.strip():
            fixed.append(cur.strip())
        ops = fixed
        mods = ''
        if ops:
            last = ops[-1].split(None, 1)
            ops[-1] = last[0]
            mods = last[1] if len(last) > 1 else ''
        self.ops = ops
        self.mods = mods
        op = self.op
        R = [regs_of(o) for o in ops]
        if op.startswith('v_mfma'):
            self.kind = 'mfma'
            self.writes = R[0]
            self.srcAB = R[1] | R[2]
            self.srcC = R[3]
            self.reads = R[1] | R[2] | R[3]
            self.passes = 4 if '16x16x32' in op else 8
        elif op.startswith('v_permlane'):
            self.kind = 'permlane'
            self.reads = R[0] | R[1]
            self.writes = R[0] | R[1]
        elif op.startswith('v_cmp'):
            self.kind = 'valu'
            self.writes = R[0]
            self.reads = set().union(*R[1:])
        elif op.startswith('v_readfirstlane') or op.startswith('v_readlane'):
            self.kind = 'readlane'
            self.writes = R[0]
            self.reads = set().union(*R[1:])
        elif op.startswith('v_'):
            self.kind = 'trans' if op.replace('_e32', '').replace('_e64', '') in TRANS else 'valu'
            self.writes = R[0]
            self.reads = set().union(*R[1:]) if len(R) > 1 else set()
            if op.startswith('v_fmac') or op.startswith('v_pk_fmac'):
                self.reads |= R[0]
            if op.startswith('v_cndmask') and len(ops) == 3:
                self.reads |= {('vcc', 0)}
        elif op.startswith('ds_read'):
            self.kind = 'dsread'
            self.writes = R[0]
            self.reads = R[1]
        elif op.startswith('ds_write'):
            self.kind = 'dswrite'
            self.reads = set().union(*R)
        elif op.startswith('buffer_load'):
            if ' lds' in (' ' + mods):
                self.kind = 'dma'
                self.reads = set().union(*R) | {('m0', 0)}
            else:
                self.kind = 'vload'
                self.writes = R[0]
                self.reads = set().union(*R[1:])
        elif op.startswith('buffer_store'):
            self.kind = 'vstore'
            self.reads = set().union(*R)
            self.data = R[0]
            self.wide = ('x4' in op or 'x3' in op)
        elif op == 's_nop':
            self.kind = 'nop'
            self.ws = int(ops[0]) + 1
        elif op == 's_waitcnt':
            self.kind = 'wait'
        elif op.startswith('s_cbranch') or op == 's_branch':
            self.kind = 'branch'
        elif op.startswith('s_cmp'):
            self.kind = 'salu'
            self.reads = set().union(*R)
            self.writes = {('scc', 0)}
        elif op.startswith('s_load') or op.startswith('s_memtime') or op.startswith('s_memrealtime'):
            self.kind = 'smem'
            self.writes = R[0]
            self.reads = set().union(*R[1:]) if len(R) > 1 else set()
        elif op.startswith('s_'):
            self.kind = 'salu'
            if ops:
                self.writes = R[0]
                self.reads = set().union(*R[1:]) if len(R) > 1 else set()

    def is_valu(self):
        return self.kind in ('valu', 'trans', 'permlane', 'readlane')


def vonly(s):
    return {r for r in s if r[0] in ('v', 'a')}


def sonly(s):
    return {r for r in s if r[0] in ('s', 'vcc')}


def needed_ws(p, c):
    n = 0
    if p.is_valu():
        pw = vonly(p.writes)
        if c.kind == 'mfma' and pw & c.reads:
            n = max(n, 2)
        if c.kind == 'permlane' and pw & c.reads:
            n = max(n, 2)
        if c.kind == 'readlane' and pw & c.reads:
            n = max(n, 1)
        if p.kind == 'trans' and c.is_valu() and c.kind != 'trans' and pw & c.reads:
            n = max(n, 1)
        if p.kind == 'trans' and c.kind == 'trans' and pw & c.reads:
            n = max(n, 1)
        ps = sonly(p.writes)
        if ps:
            if c.is_valu() and ps & c.reads:
                n = max(n, 2)
            if c.kind in ('dma', 'vload', 'vstore') and ps & c.reads:
                n = max(n, 5)
            if c.kind in ('salu', 'branch') and ps & c.reads:
                n = max(n, 4)
    if p.kind == 'mfma':
        big = {4: 8, 8: 12}[p.passes]
        ovl = {4: 6, 8: 10}[p.passes]
        war = {4: 3, 8: 7}[p.passes]
        D = p.writes
        if c.kind == 'mfma':
            if D & c.srcAB:
                n = max(n, big)
            if D & c.srcC:
                if c.srcC == D and c.passes == p.passes:
                    pass
                else:
                    n = max(n, ovl)
        elif c.is_valu():
            if D & (c.reads | c.writes):
                n = max(n, big)
            if p.srcC & c.writes:
                n = max(n, war)
        elif c.kind in ('dsread', 'dswrite', 'dma', 'vload', 'vstore'):
            if D & (c.reads | c.writes):
                n = max(n, big)
    if p.kind == 'salu' and ('m0', 0) in p.writes and c.kind == 'dma':
        n = max(n, 1)
    if p.kind == 'vstore' and p.wide:
        if c.is_valu() and p.data & c.writes:
            n = max(n, 2)
        elif (c.kind in ('dsread', 'vload', 'mfma')) and p.data & c.writes:
            n = max(n, 1)
    return n


class Prog:
    def __init__(self):
        self.ins = []

    def __call__(self, text, comment=None):
        for line in text.split('\n'):
            line = line.strip()
            if not line:
                continue
            self.ins.append(Inst(line, comment))

    def extend(self, insts):
        self.ins.extend(insts)

    def insert_lgkm_waits(self):
        out = []
        pending = []
        for i in self.ins:
            if i.kind in ('label', 'branch'):
                if pending and any(p for p in pending):
                    raise RuntimeError('ds reads pending across label/branch: ' + i.text)
                pending = []
                out.append(i)
                continue
            if i.kind == 'wait' and 'lgkmcnt' in i.text:
                n = int(re.search(r'lgkmcnt\((\d+)\)', i.text).group(1))
                pending = pending[len(pending) - n:] if n > 0 else []
                out.append(i)
                continue
            if i.kind == 'salu' and i.op == 's_barrier':
                if pending:
                    raise RuntimeError('ds ops pending at barrier')
            touch = i.reads | i.writes
            last = -1
            for k, d in enumerate(pending):
                if d & touch:
                    last = k
            if last >= 0:
                n = len(pending) - 1 - last
                assert n <= 15
                out.append(Inst(f's_waitcnt lgkmcnt({n})'))
                pending = pending[last + 1:]
            if i.kind == 'dsread':
                pending.append(set(i.writes))
                assert len(pending) <= 15, 'too many outstanding ds ops'
            elif i.kind == 'dswrite':
                pending.append(set())
                assert len(pending) <= 15
            out.append(i)
        self.ins = out

    def insert_nops(self):
        out = []
        nnop = 0
        for c in self.ins:
            if c.ws > 0 and c.kind not in ('nop',):
                need = 0
                dist = 0
                for p in reversed(out):
                    if dist >= 20:
                        break
                    if p.ws == 0:
                        continue
                    n = needed_ws(p, c)
                    if n - dist > need:
                        need = n - dist
                    dist += p.ws
                if need > 0:
                    out.append(Inst(f's_nop {need - 1}'))
                    nnop += need
            out.append(c)
        self.ins = out
        return nnop

    def check_edge(self, from_idx_pred, to_label):
        li = next(k for k, i in enumerate(self.ins) if i.kind == 'label' and i.text.strip() == to_label + ':')
        for bi, b in enumerate(self.ins):
            if b.kind == 'branch' and b.ops and b.ops[-1] == to_label:
                before = [x for x in self.ins[max(0, bi - 40):bi + 1] if x.ws > 0]
                after = [x for x in self.ins[li + 1:li + 41] if x.ws > 0]
                d_after = 0
                for c in after:
                    dist = d_after
                    for p in reversed(before):
                        if dist >= 20:
                            break
                        n = needed_ws(p, c)
                        if n > dist:
                            raise RuntimeError(f'hazard across branch to {to_label}: {p.text} -> {c.text} need {n} have {dist}')
                        dist += p.ws
                    d_after += c.ws
                    if d_after >= 20 or c.kind == 'branch' and c.op == 's_branch':
                        break

    def check_all_edges(self):
        for i in self.ins:
            if i.kind == 'label':
                self.check_edge(None, i.text.strip()[:-1])

    def render(self):
        lines = []
        for i in self.ins:
            if i.kind in ('label', 'directive'):
                lines.append(i.text)
            else:
                lines.append('    ' + i.text + (f'    ; {i.comment}' if i.comment else ''))
        return '\n'.join(lines) + '\n'

    def stats(self):
        from collections import Counter
        return Counter(i.kind for i in self.ins)


def v(i, n=1):
    return f'v{i}' if n == 1 else f'v[{i}:{i + n - 1}]'


def s(i, n=1):
    return f's{i}' if n == 1 else f's[{i}:{i + n - 1}]'
```

```python
import sys, struct, math
sys.path.insert(0, 'work')
from asmgen import *

NAME = 'standalone__gqa_softmax__near_ridge'

def f32bits(x):
    return struct.unpack('<I', struct.pack('<f', x))[0]

def gen(opts):
    NWG = opts.get('nwg', 512)
    NH = 1024 // NWG
    NSLOT = opts.get('nslot', 5)
    LD_POL = opts.get('ldpol', '')
    ST_POL = opts.get('stpol', '')
    NB = opts.get('nb', 6)
    TILE = 16384
    LA = NSLOT - 1
    assert LA == 4

    O0 = 0; Q0 = 96; S0 = 144; FB0 = 192
    def O(T, e): return O0 + (T * 8 + e) * 4
    def Q(T, s_): return Q0 + (T * 4 + s_) * 4
    def S(T, n=0): return S0 + T * 16 + n * 4
    def P(T, hh): return S0 + T * 16 + hh * 8
    def FB(i): return FB0 + (i % NB) * 4
    nxt = FB0 + NB * 4
    M = [nxt + i for i in range(3)]; nxt += 3
    MC = [nxt + i for i in range(3)]; nxt += 3
    L = [nxt + i for i in range(3)]; nxt += 3
    AL = [nxt + i for i in range(3)]; nxt += 3
    TM = [nxt + i for i in range(3)]; nxt += 3
    SM = [nxt + i for i in range(3)]; nxt += 3
    VOFFK = nxt; VOFFV = nxt + 1; VOFFO = nxt + 2; KB = nxt + 3; VB = nxt + 4; nxt += 5
    AD = [nxt + i for i in range(8)]; nxt += 8
    NVGPR = nxt
    assert NVGPR <= 256, NVGPR

    SRD_Q, SRD_K, SRD_V, SRD_O, SRD_KN = 8, 12, 16, 20, 24
    sW4K, sCUR, sPREV, sK, sV, sQ, sO, sJ, sIT, sC, sT0, sW1K = 28, 29, 30, 31, 32, 33, 34, 35, 44, 45, 46, 47

    p = Prog()
    uid = [0]
    def lab(x):
        uid[0] += 1
        return f'L_{x}_{uid[0]}'

    def dma(srd, soff, voff):
        for n in range(4):
            p(f'buffer_load_dwordx4 {v(voff)}, {s(srd,4)}, {s(soff)} offen offset:{n*1024}{LD_POL} lds')
        p(f's_add_u32 {s(soff)}, {s(soff)}, {TILE}')

    def rotate():
        p(f's_mov_b32 {s(sPREV)}, {s(sCUR)}')
        p(f's_add_u32 {s(sCUR)}, {s(sCUR)}, {TILE}')
        p(f's_cmp_eq_u32 {s(sCUR)}, {NSLOT*TILE}')
        p(f's_cselect_b32 {s(sCUR)}, 0, {s(sCUR)}')

    p(f's_cmp_ge_u32 s2, {NWG}')
    p('s_cbranch_scc1 L_end')
    p('s_load_dwordx8 s[36:43], s[0:1], 0')
    a, b, c_, d, e_, w = 1, 2, 3, 4, 5, 6
    p(f'v_lshrrev_b32 {v(w)}, 6, v0', 'wave id')
    p(f'v_and_b32 v0, 63, v0', 'lane')
    p(f'v_readfirstlane_b32 {s(sT0)}, {v(w)}')
    p(f'v_lshrrev_b32 {v(a)}, 4, v0', 't = g = lane>>4')
    p(f'v_and_b32 {v(b)}, 15, v0', 'pos = rho = lane&15')
    p(f'v_lshl_add_u32 {v(c_)}, {v(w)}, 4, {v(a)}', '16w+t')
    p(f'v_lshl_add_u32 {v(d)}, {v(w)}, 2, {v(a)}', '4w+t')
    p(f'v_xor_b32 {v(d)}, {v(d)}, {v(b)}')
    p(f'v_lshlrev_b32 {v(d)}, 4, {v(d)}')
    p(f'v_lshl_add_u32 {v(VOFFK)}, {v(c_)}, 8, {v(d)}')
    p(f'v_and_b32 {v(d)}, 1, {v(w)}')
    p(f'v_lshlrev_b32 {v(d)}, 2, {v(d)}')
    p(f'v_add_u32 {v(d)}, {v(d)}, {v(a)}')
    p(f'v_lshlrev_b32 {v(d)}, 1, {v(d)}', '8(w&1)+2t')
    p(f'v_xor_b32 {v(d)}, {v(d)}, {v(b)}')
    p(f'v_lshlrev_b32 {v(d)}, 4, {v(d)}')
    p(f'v_lshl_add_u32 {v(VOFFV)}, {v(c_)}, 8, {v(d)}')
    p(f'v_lshrrev_b32 {v(c_)}, 2, {v(b)}', 'rho>>2')
    p(f'v_and_b32 {v(d)}, 3, {v(b)}', 'rho&3 (= c too)')
    p(f'v_xor_b32 {v(e_)}, {v(a)}, {v(b)}')
    p(f'v_lshlrev_b32 {v(e_)}, 4, {v(e_)}')
    p(f'v_lshl_add_u32 {v(e_)}, {v(d)}, 8, {v(e_)}')
    p(f'v_lshl_add_u32 {v(KB)}, {v(c_)}, 12, {v(e_)}')
    p(f'v_and_b32 {v(e_)}, 1, {v(a)}')
    p(f'v_lshl_add_u32 {v(e_)}, {v(e_)}, 2, {v(c_)}', '4(g&1)+r')
    p(f'v_lshlrev_b32 {v(e_)}, 5, {v(e_)}')
    p(f'v_lshl_add_u32 {v(e_)}, {v(d)}, 3, {v(e_)}')
    p(f'v_lshl_add_u32 {v(e_)}, {v(c_)}, 8, {v(e_)}')
    p(f'v_lshl_add_u32 {v(VB)}, {v(a)}, 12, {v(e_)}')
    p(f'v_lshl_add_u32 {v(e_)}, {v(w)}, 2, {v(d)}')
    p(f'v_lshl_add_u32 {v(e_)}, {v(c_)}, 4, {v(e_)}')
    p(f'v_lshlrev_b32 {v(e_)}, 8, {v(e_)}')
    p(f'v_and_b32 {v(d)}, 1, {v(a)}')
    p(f'v_lshl_add_u32 {v(e_)}, {v(d)}, 5, {v(e_)}')
    p(f'v_lshrrev_b32 {v(d)}, 1, {v(a)}')
    p(f'v_lshl_add_u32 {v(VOFFO)}, {v(d)}, 4, {v(e_)}')
    p(f's_lshl_b32 {s(sW4K)}, {s(sT0)}, 12')
    p(f's_lshl_b32 {s(sW1K)}, {s(sT0)}, 10')
    p(f's_mul_i32 {s(sQ)}, s2, {NH*49152}')
    p(f's_mov_b32 {s(sO)}, {s(sQ)}')
    p(f's_mul_i32 {s(sK)}, s2, {NH*131072}')
    p(f's_mov_b32 {s(sV)}, {s(sK)}')
    p(f's_mov_b32 {s(sC)}, 0x{f32bits(128**-0.5 * math.log2(math.e)):08x}')
    p(f's_mov_b32 {s(sIT)}, 0')
    p('s_waitcnt lgkmcnt(0)')
    for srd, src, nbytes in ((SRD_Q, 36, 50331648), (SRD_K, 38, 134217728), (SRD_V, 40, 134217728),
                             (SRD_O, 42, 50331648), (SRD_KN, 38, 134217728)):
        p(f's_mov_b32 {s(srd)}, {s(src)}')
        p(f's_and_b32 {s(srd+1)}, {s(src+1)}, 0xffff')
        p(f's_mov_b32 {s(srd+2)}, {nbytes}')
        p(f's_mov_b32 {s(srd+3)}, 0x20000')
    for t in range(4):
        p(f's_add_u32 m0, {s(sW4K)}, {t*TILE}')
        if t < 3:
            dma(SRD_Q, sQ, VOFFK)
        else:
            dma(SRD_K, sK, VOFFK)
    p(f's_mov_b32 {s(sCUR)}, 0')
    p(f's_mov_b32 {s(sPREV)}, {(NSLOT-1)*TILE}')

    p('L_head:')
    p(f's_cmp_eq_u32 {s(sIT)}, {NH-1}')
    p(f's_cselect_b32 {s(SRD_Q+2)}, 0, {s(SRD_Q+2)}')
    p(f's_cselect_b32 {s(SRD_KN+2)}, 0, {s(SRD_KN+2)}')
    for i in range(96):
        p(f'v_mov_b32 {v(O0+i)}, 0')
    for T in range(3):
        p(f'v_mov_b32 {v(M[T])}, 0xff800000')
        p(f'v_mov_b32 {v(MC[T])}, 0xff800000')
        p(f'v_mov_b32 {v(L[T])}, 0')
    for T in range(3):
        sk = lab('qw')
        p(f's_cmp_lg_u32 {s(sIT)}, 0')
        p('s_waitcnt vmcnt(24)')
        p(f's_cbranch_scc1 {sk}')
        p('s_waitcnt vmcnt(12)')
        p(f'{sk}:')
        p('s_barrier')
        p(f's_add_u32 m0, {s(sPREV)}, {s(sW4K)}')
        p(f's_add_u32 {s(sT0)}, {s(sCUR)}, {s(sW1K)}')
        if T == 1:
            dma(SRD_K, sK, VOFFK)
        else:
            dma(SRD_V, sV, VOFFV)
        p(f'v_add_u32 {v(AD[0])}, {s(sT0)}, {v(KB)}')
        for s_ in range(1, 4):
            p(f'v_xor_b32 {v(AD[s_])}, {s_*64}, {v(AD[0])}')
        for s_ in range(4):
            p(f'ds_read_b128 {v(Q(T,s_),4)}, {v(AD[s_])}')
        rotate()
        p('s_waitcnt lgkmcnt(0)')
    p(f's_mov_b32 {s(sJ)}, 0')

    p('L_kv:')
    p('s_waitcnt vmcnt(12)')
    p('s_barrier')
    p(f's_add_u32 m0, {s(sPREV)}, {s(sW4K)}')
    p(f'v_add_u32 {v(AD[0])}, {s(sCUR)}, {v(KB)}')
    for s_ in range(1, 4):
        p(f'v_xor_b32 {v(AD[s_])}, {s_*64}, {v(AD[0])}')
    p(f's_cmp_ge_u32 {s(sJ)}, 6')
    p('s_cbranch_scc1 L_kq')
    dma(SRD_K, sK, VOFFK)
    p('s_branch L_kdone')
    p('L_kq:')
    dma(SRD_Q, sQ, VOFFK)
    p('L_kdone:')
    rotate()
    frags = [(n, s_) for n in range(4) for s_ in range(4)]
    def kread(i):
        n, s_ = frags[i]
        p(f'ds_read_b128 {v(FB(i),4)}, {v(AD[s_])} offset:{n*1024}')
    for i in range(NB - 1):
        kread(i)
    for i, (n, s_) in enumerate(frags):
        if i + NB - 1 < len(frags):
            kread(i + NB - 1)
        for T in range(3):
            cc = '0' if s_ == 0 else v(S(T, n), 4)
            p(f'v_mfma_f32_16x16x32_bf16 {v(S(T,n),4)}, {v(FB(i),4)}, {v(Q(T,s_),4)}, {cc}')
    for k in range(8):
        for T in range(3):
            p(f'v_max3_f32 {v(M[T])}, {v(S(T)+2*k)}, {v(S(T)+2*k+1)}, {v(M[T])}')
    for op in ('v_permlane16_swap_b32', 'v_permlane32_swap_b32'):
        for T in range(3):
            p(f'v_mov_b32 {v(TM[T])}, {v(M[T])}')
        for T in range(3):
            p(f'{op} {v(M[T])}, {v(TM[T])}')
        for T in range(3):
            p(f'v_max_f32 {v(M[T])}, {v(M[T])}, {v(TM[T])}')
    for T in range(3):
        p(f'v_mul_f32 {v(TM[T])}, {s(sC)}, {v(M[T])}')
    for T in range(3):
        p(f'v_sub_f32 {v(AL[T])}, {v(MC[T])}, {v(TM[T])}')
    for T in range(3):
        p(f'v_mov_b32 {v(MC[T])}, {v(TM[T])}')
    for T in range(3):
        p(f'v_exp_f32 {v(AL[T])}, {v(AL[T])}')
    for k in range(16):
        for T in range(3):
            p(f'v_fma_f32 {v(S(T)+k)}, {v(S(T)+k)}, {s(sC)}, -{v(TM[T])}')
        for T in range(3):
            p(f'v_exp_f32 {v(S(T)+k)}, {v(S(T)+k)}')
        if k >= 1:
            kk = k - 1
            for T in range(3):
                if kk == 0:
                    p(f'v_fma_f32 {v(L[T])}, {v(L[T])}, {v(AL[T])}, {v(S(T)+kk)}')
                else:
                    p(f'v_add_f32 {v(L[T])}, {v(L[T])}, {v(S(T)+kk)}')
    for T in range(3):
        p(f'v_add_f32 {v(L[T])}, {v(L[T])}, {v(S(T)+15)}')
    for hh in range(2):
        for q in range(4):
            for T in range(3):
                p(f'v_cvt_pk_bf16_f32 {v(P(T,hh)+q)}, {v(S(T)+8*hh+2*q)}, {v(S(T)+8*hh+2*q+1)}')
    p('s_waitcnt vmcnt(12)')
    p('s_barrier')
    p(f's_add_u32 m0, {s(sPREV)}, {s(sW4K)}')
    p(f'v_add_u32 {v(AD[0])}, {s(sCUR)}, {v(VB)}')
    for e in range(1, 8):
        p(f'v_xor_b32 {v(AD[e])}, {e*32}, {v(AD[0])}')
    p(f's_cmp_ge_u32 {s(sJ)}, 6')
    p('s_cbranch_scc1 L_vx')
    dma(SRD_V, sV, VOFFV)
    p('s_branch L_vdone')
    p('L_vx:')
    p(f's_cmp_eq_u32 {s(sJ)}, 7')
    p('s_cbranch_scc1 L_vk')
    dma(SRD_Q, sQ, VOFFK)
    p('s_branch L_vdone')
    p('L_vk:')
    dma(SRD_KN, sK, VOFFK)
    p('L_vdone:')
    rotate()
    vfr = [(e, hh) for e in range(8) for hh in range(2)]
    def vread(i):
        e, hh = vfr[i]
        p(f'ds_read_b64_tr_b16 {v(FB(i),2)}, {v(AD[e])} offset:{(2*hh)*1024}')
        p(f'ds_read_b64_tr_b16 {v(FB(i)+2,2)}, {v(AD[e])} offset:{(2*hh+1)*1024}')
    def rescale(e):
        return [f'v_mul_f32 {v(O(T,e)+j)}, {v(O(T,e)+j)}, {v(AL[T])}' for T in range(3) for j in range(4)]
    for i in range(NB - 1):
        vread(i)
    for x in rescale(0):
        p(x)
    for i, (e, hh) in enumerate(vfr):
        if i + NB - 1 < len(vfr):
            vread(i + NB - 1)
        rs = rescale(e + 1)[hh*6:hh*6+6] if e < 7 else []
        for T in range(3):
            p(f'v_mfma_f32_16x16x32_bf16 {v(O(T,e),4)}, {v(FB(i),4)}, {v(P(T,hh),4)}, {v(O(T,e),4)}')
            for x in rs[2*T:2*T+2]:
                p(x)
    p(f's_add_u32 {s(sJ)}, {s(sJ)}, 1')
    p(f's_cmp_lt_u32 {s(sJ)}, 8')
    p('s_cbranch_scc1 L_kv')

    for op in ('v_permlane16_swap_b32', 'v_permlane32_swap_b32'):
        for T in range(3):
            p(f'v_mov_b32 {v(TM[T])}, {v(L[T])}')
        for T in range(3):
            p(f'{op} {v(L[T])}, {v(TM[T])}')
        for T in range(3):
            p(f'v_add_f32 {v(L[T])}, {v(L[T])}, {v(TM[T])}')
    for T in range(3):
        p(f'v_rcp_f32 {v(AL[T])}, {v(L[T])}')
    k = 0
    for T in range(3):
        for E in range(4):
            r = S0 + (k % 12) * 4
            k += 1
            for x in range(2):
                e = 2 * E + x
                for j in range(4):
                    p(f'v_mul_f32 {v(O(T,e)+j)}, {v(O(T,e)+j)}, {v(AL[T])}')
            for x in range(2):
                e = 2 * E + x
                p(f'v_cvt_pk_bf16_f32 {v(r+2*x)}, {v(O(T,e))}, {v(O(T,e)+1)}')
                p(f'v_cvt_pk_bf16_f32 {v(r+2*x+1)}, {v(O(T,e)+2)}, {v(O(T,e)+3)}')
            p(f'v_permlane16_swap_b32 {v(r)}, {v(r+2)}')
            p(f'v_permlane16_swap_b32 {v(r+1)}, {v(r+3)}')
            p(f'buffer_store_dwordx4 {v(r,4)}, {v(VOFFO)}, {s(SRD_O,4)}, {s(sO)} offen offset:{64*E}{ST_POL}')
        p(f's_add_u32 {s(sO)}, {s(sO)}, {TILE}')
    p(f's_add_u32 {s(sIT)}, {s(sIT)}, 1')
    p(f's_cmp_lt_u32 {s(sIT)}, {NH}')
    p('s_cbranch_scc1 L_head')
    p('s_waitcnt vmcnt(0)')
    p('L_end:')
    p('s_endpgm')

    p.insert_lgkm_waits()
    nn = p.insert_nops()
    p.check_all_edges()
    sys.stderr.write(f'vgprs={NVGPR} nop-states={nn} stats={dict(p.stats())}\n')

    head = open('cdna_kernels/' + NAME + '.s.ref').read().split('; Override launch')[0]
    out = head
    out += f'; @launch grid=({NWG},1,1) block=(256,1,1) lds={NSLOT*TILE}\n'
    out += f'''.amdgcn_target "amdgcn-amd-amdhsa--gfx950"
.text
.globl {NAME}_kernel
.p2align 8
.type {NAME}_kernel,@function
{NAME}_kernel:
'''
    out += p.render()
    out += f'''.section .rodata,"a"
.p2align 6
.amdhsa_kernel {NAME}_kernel
  .amdhsa_next_free_vgpr 256
  .amdhsa_next_free_sgpr 64
  .amdhsa_accum_offset 256
  .amdhsa_group_segment_fixed_size 0
  .amdhsa_kernarg_size 48
  .amdhsa_user_sgpr_count 2
  .amdhsa_user_sgpr_kernarg_segment_ptr 1
  .amdhsa_system_sgpr_workgroup_id_x 1
.end_amdhsa_kernel
'''
    return out

if __name__ == '__main__':
    opts = {}
    outp = 'cdna_kernels/' + NAME + '.s'
    for a in sys.argv[1:]:
        k, val = a.split('=', 1)
        if k == 'out':
            outp = val
        elif k in ('ldpol', 'stpol'):
            opts[k] = (' ' + val.replace('+', ' ')) if val else ''
        else:
            opts[k] = int(val)
    open(outp, 'w').write(gen(opts))
```

```python
import sys, struct, math
sys.path.insert(0, 'work')
from asmgen import *

NAME = 'standalone__gqa_softmax__near_ridge'

def f32bits(x):
    return struct.unpack('<I', struct.pack('<f', x))[0]

def gen(opts):
    NWG = opts.get('nwg', 512)
    NH = 1024 // NWG
    NSLOT = opts.get('nslot', 5)
    LD_POL = opts.get('ldpol', '')
    ST_POL = opts.get('stpol', '')
    NB = opts.get('nb', 6)
    TILE = 16384
    NOCOMP = opts.get('nocomp', 0)
    NODMA = opts.get('nodma', 0)
    LA = NSLOT - 1
    assert LA == 4

    O0 = 0; Q0 = 96; S0 = 144; FB0 = 192
    def O(T, e): return O0 + (T * 8 + e) * 4
    def Q(T, s_): return Q0 + (T * 4 + s_) * 4
    def S(T, n=0): return S0 + T * 16 + n * 4
    def P(T, hh): return S0 + T * 16 + hh * 8
    def FB(i): return FB0 + (i % NB) * 4
    nxt = FB0 + NB * 4
    M = [nxt + i for i in range(3)]; nxt += 3
    MC = [nxt + i for i in range(3)]; nxt += 3
    L = [nxt + i for i in range(3)]; nxt += 3
    AL = [nxt + i for i in range(3)]; nxt += 3
    TM = [nxt + i for i in range(3)]; nxt += 3
    SM = [nxt + i for i in range(3)]; nxt += 3
    VOFFK = nxt; VOFFV = nxt + 1; VOFFO = nxt + 2; KB = nxt + 3; VB = nxt + 4; nxt += 5
    AD = [nxt + i for i in range(8)]; nxt += 8
    NVGPR = nxt
    assert NVGPR <= 256, NVGPR

    SRD_Q, SRD_K, SRD_V, SRD_O, SRD_KN = 8, 12, 16, 20, 24
    sW4K, sCUR, sPREV, sK, sV, sQ, sO, sJ, sIT, sC, sT0, sW1K = 28, 29, 30, 31, 32, 33, 34, 35, 44, 45, 46, 47

    p = Prog()
    uid = [0]
    def lab(x):
        uid[0] += 1
        return f'L_{x}_{uid[0]}'

    def dma(srd, soff, voff):
        for n in range(4):
            if NODMA == 2: break
            p(f'buffer_load_dwordx4 {v(voff)}, {s(srd,4)}, {s(soff)} offen offset:{n*1024}{LD_POL} lds')
        p(f's_add_u32 {s(soff)}, {s(soff)}, {TILE}')

    def rotate():
        p(f's_mov_b32 {s(sPREV)}, {s(sCUR)}')
        p(f's_add_u32 {s(sCUR)}, {s(sCUR)}, {TILE}')
        p(f's_cmp_eq_u32 {s(sCUR)}, {NSLOT*TILE}')
        p(f's_cselect_b32 {s(sCUR)}, 0, {s(sCUR)}')

    p(f's_cmp_ge_u32 s2, {NWG}')
    p('s_cbranch_scc1 L_end')
    p('s_load_dwordx8 s[36:43], s[0:1], 0')
    a, b, c_, d, e_, w = 1, 2, 3, 4, 5, 6
    p(f'v_lshrrev_b32 {v(w)}, 6, v0', 'wave id')
    p(f'v_and_b32 v0, 63, v0', 'lane')
    p(f'v_readfirstlane_b32 {s(sT0)}, {v(w)}')
    p(f'v_lshrrev_b32 {v(a)}, 4, v0', 't = g = lane>>4')
    p(f'v_and_b32 {v(b)}, 15, v0', 'pos = rho = lane&15')
    p(f'v_lshl_add_u32 {v(c_)}, {v(w)}, 4, {v(a)}', '16w+t')
    p(f'v_lshl_add_u32 {v(d)}, {v(w)}, 2, {v(a)}', '4w+t')
    p(f'v_xor_b32 {v(d)}, {v(d)}, {v(b)}')
    p(f'v_lshlrev_b32 {v(d)}, 4, {v(d)}')
    p(f'v_lshl_add_u32 {v(VOFFK)}, {v(c_)}, 8, {v(d)}')
    p(f'v_and_b32 {v(d)}, 1, {v(w)}')
    p(f'v_lshlrev_b32 {v(d)}, 2, {v(d)}')
    p(f'v_add_u32 {v(d)}, {v(d)}, {v(a)}')
    p(f'v_lshlrev_b32 {v(d)}, 1, {v(d)}', '8(w&1)+2t')
    p(f'v_xor_b32 {v(d)}, {v(d)}, {v(b)}')
    p(f'v_lshlrev_b32 {v(d)}, 4, {v(d)}')
    p(f'v_lshl_add_u32 {v(VOFFV)}, {v(c_)}, 8, {v(d)}')
    p(f'v_lshrrev_b32 {v(c_)}, 2, {v(b)}', 'rho>>2')
    p(f'v_and_b32 {v(d)}, 3, {v(b)}', 'rho&3 (= c too)')
    p(f'v_xor_b32 {v(e_)}, {v(a)}, {v(b)}')
    p(f'v_lshlrev_b32 {v(e_)}, 4, {v(e_)}')
    p(f'v_lshl_add_u32 {v(e_)}, {v(d)}, 8, {v(e_)}')
    p(f'v_lshl_add_u32 {v(KB)}, {v(c_)}, 12, {v(e_)}')
    p(f'v_and_b32 {v(e_)}, 1, {v(a)}')
    p(f'v_lshl_add_u32 {v(e_)}, {v(e_)}, 2, {v(c_)}', '4(g&1)+r')
    p(f'v_lshlrev_b32 {v(e_)}, 5, {v(e_)}')
    p(f'v_lshl_add_u32 {v(e_)}, {v(d)}, 3, {v(e_)}')
    p(f'v_lshl_add_u32 {v(e_)}, {v(c_)}, 8, {v(e_)}')
    p(f'v_lshl_add_u32 {v(VB)}, {v(a)}, 12, {v(e_)}')
    p(f'v_lshl_add_u32 {v(e_)}, {v(w)}, 2, {v(d)}')
    p(f'v_lshl_add_u32 {v(e_)}, {v(c_)}, 4, {v(e_)}')
    p(f'v_lshlrev_b32 {v(e_)}, 8, {v(e_)}')
    p(f'v_and_b32 {v(d)}, 1, {v(a)}')
    p(f'v_lshl_add_u32 {v(e_)}, {v(d)}, 5, {v(e_)}')
    p(f'v_lshrrev_b32 {v(d)}, 1, {v(a)}')
    p(f'v_lshl_add_u32 {v(VOFFO)}, {v(d)}, 4, {v(e_)}')
    p(f's_lshl_b32 {s(sW4K)}, {s(sT0)}, 12')
    p(f's_lshl_b32 {s(sW1K)}, {s(sT0)}, 10')
    p(f's_mul_i32 {s(sQ)}, s2, {NH*49152}')
    p(f's_mov_b32 {s(sO)}, {s(sQ)}')
    p(f's_mul_i32 {s(sK)}, s2, {NH*131072}')
    p(f's_mov_b32 {s(sV)}, {s(sK)}')
    p(f's_mov_b32 {s(sC)}, 0x{f32bits(128**-0.5 * math.log2(math.e)):08x}')
    p(f's_mov_b32 {s(sIT)}, 0')
    p('s_waitcnt lgkmcnt(0)')
    for srd, src, nbytes in ((SRD_Q, 36, 50331648), (SRD_K, 38, 134217728), (SRD_V, 40, 134217728),
                             (SRD_O, 42, 50331648), (SRD_KN, 38, 134217728)):
        p(f's_mov_b32 {s(srd)}, {s(src)}')
        p(f's_and_b32 {s(srd+1)}, {s(src+1)}, 0xffff')
        p(f's_mov_b32 {s(srd+2)}, {0 if (NODMA and srd != SRD_O) else nbytes}')
        p(f's_mov_b32 {s(srd+3)}, 0x20000')
    for t in range(4):
        p(f's_add_u32 m0, {s(sW4K)}, {t*TILE}')
        if t < 3:
            dma(SRD_Q, sQ, VOFFK)
        else:
            dma(SRD_K, sK, VOFFK)
    p(f's_mov_b32 {s(sCUR)}, 0')
    p(f's_mov_b32 {s(sPREV)}, {(NSLOT-1)*TILE}')

    p('L_head:')
    p(f's_cmp_eq_u32 {s(sIT)}, {NH-1}')
    p(f's_cselect_b32 {s(SRD_Q+2)}, 0, {s(SRD_Q+2)}')
    p(f's_cselect_b32 {s(SRD_KN+2)}, 0, {s(SRD_KN+2)}')
    for i in range(96):
        p(f'v_mov_b32 {v(O0+i)}, 0')
    for T in range(3):
        p(f'v_mov_b32 {v(M[T])}, 0xff800000')
        p(f'v_mov_b32 {v(MC[T])}, 0xff800000')
        p(f'v_mov_b32 {v(L[T])}, 0')
    for T in range(3):
        sk = lab('qw')
        p(f's_cmp_lg_u32 {s(sIT)}, 0')
        p('s_waitcnt vmcnt(24)')
        p(f's_cbranch_scc1 {sk}')
        p('s_waitcnt vmcnt(12)')
        p(f'{sk}:')
        p('s_barrier')
        p(f's_add_u32 m0, {s(sPREV)}, {s(sW4K)}')
        p(f's_add_u32 {s(sT0)}, {s(sCUR)}, {s(sW1K)}')
        if T == 1:
            dma(SRD_K, sK, VOFFK)
        else:
            dma(SRD_V, sV, VOFFV)
        p(f'v_add_u32 {v(AD[0])}, {s(sT0)}, {v(KB)}')
        for s_ in range(1, 4):
            p(f'v_xor_b32 {v(AD[s_])}, {s_*64}, {v(AD[0])}')
        for s_ in range(4):
            p(f'ds_read_b128 {v(Q(T,s_),4)}, {v(AD[s_])}')
        rotate()
        p('s_waitcnt lgkmcnt(0)')
    p(f's_mov_b32 {s(sJ)}, 0')

    p('L_kv:')
    p('s_waitcnt vmcnt(12)')
    p('s_barrier')
    p(f's_add_u32 m0, {s(sPREV)}, {s(sW4K)}')
    p(f'v_add_u32 {v(AD[0])}, {s(sCUR)}, {v(KB)}')
    for s_ in range(1, 4):
        p(f'v_xor_b32 {v(AD[s_])}, {s_*64}, {v(AD[0])}')
    p(f's_cmp_ge_u32 {s(sJ)}, 6')
    p('s_cbranch_scc1 L_kq')
    dma(SRD_K, sK, VOFFK)
    p('s_branch L_kdone')
    p('L_kq:')
    dma(SRD_Q, sQ, VOFFK)
    p('L_kdone:')
    rotate()
    mark0 = len(p.ins)
    frags = [(n, s_) for n in range(4) for s_ in range(4)]
    def kread(i):
        n, s_ = frags[i]
        p(f'ds_read_b128 {v(FB(i),4)}, {v(AD[s_])} offset:{n*1024}')
    for i in range(NB - 1):
        kread(i)
    for i, (n, s_) in enumerate(frags):
        if i + NB - 1 < len(frags):
            kread(i + NB - 1)
        for T in range(3):
            cc = '0' if s_ == 0 else v(S(T, n), 4)
            p(f'v_mfma_f32_16x16x32_bf16 {v(S(T,n),4)}, {v(FB(i),4)}, {v(Q(T,s_),4)}, {cc}')
    for k in range(8):
        for T in range(3):
            p(f'v_max3_f32 {v(M[T])}, {v(S(T)+2*k)}, {v(S(T)+2*k+1)}, {v(M[T])}')
    for op in ('v_permlane16_swap_b32', 'v_permlane32_swap_b32'):
        for T in range(3):
            p(f'v_mov_b32 {v(TM[T])}, {v(M[T])}')
        for T in range(3):
            p(f'{op} {v(M[T])}, {v(TM[T])}')
        for T in range(3):
            p(f'v_max_f32 {v(M[T])}, {v(M[T])}, {v(TM[T])}')
    for T in range(3):
        p(f'v_mul_f32 {v(TM[T])}, {s(sC)}, {v(M[T])}')
    for T in range(3):
        p(f'v_sub_f32 {v(AL[T])}, {v(MC[T])}, {v(TM[T])}')
    for T in range(3):
        p(f'v_mov_b32 {v(MC[T])}, {v(TM[T])}')
    for T in range(3):
        p(f'v_exp_f32 {v(AL[T])}, {v(AL[T])}')
    for k in range(16):
        for T in range(3):
            p(f'v_fma_f32 {v(S(T)+k)}, {v(S(T)+k)}, {s(sC)}, -{v(TM[T])}')
        for T in range(3):
            p(f'v_exp_f32 {v(S(T)+k)}, {v(S(T)+k)}')
        if k >= 1:
            kk = k - 1
            for T in range(3):
                if kk == 0:
                    p(f'v_fma_f32 {v(L[T])}, {v(L[T])}, {v(AL[T])}, {v(S(T)+kk)}')
                else:
                    p(f'v_add_f32 {v(L[T])}, {v(L[T])}, {v(S(T)+kk)}')
    for T in range(3):
        p(f'v_add_f32 {v(L[T])}, {v(L[T])}, {v(S(T)+15)}')
    for hh in range(2):
        for q in range(4):
            for T in range(3):
                p(f'v_cvt_pk_bf16_f32 {v(P(T,hh)+q)}, {v(S(T)+8*hh+2*q)}, {v(S(T)+8*hh+2*q+1)}')
    if NOCOMP: del p.ins[mark0:]
    p('s_waitcnt vmcnt(12)')
    p('s_barrier')
    p(f's_add_u32 m0, {s(sPREV)}, {s(sW4K)}')
    p(f'v_add_u32 {v(AD[0])}, {s(sCUR)}, {v(VB)}')
    for e in range(1, 8):
        p(f'v_xor_b32 {v(AD[e])}, {e*32}, {v(AD[0])}')
    p(f's_cmp_ge_u32 {s(sJ)}, 6')
    p('s_cbranch_scc1 L_vx')
    dma(SRD_V, sV, VOFFV)
    p('s_branch L_vdone')
    p('L_vx:')
    p(f's_cmp_eq_u32 {s(sJ)}, 7')
    p('s_cbranch_scc1 L_vk')
    dma(SRD_Q, sQ, VOFFK)
    p('s_branch L_vdone')
    p('L_vk:')
    dma(SRD_KN, sK, VOFFK)
    p('L_vdone:')
    rotate()
    mark1 = len(p.ins)
    vfr = [(e, hh) for e in range(8) for hh in range(2)]
    def vread(i):
        e, hh = vfr[i]
        p(f'ds_read_b64_tr_b16 {v(FB(i),2)}, {v(AD[e])} offset:{(2*hh)*1024}')
        p(f'ds_read_b64_tr_b16 {v(FB(i)+2,2)}, {v(AD[e])} offset:{(2*hh+1)*1024}')
    def rescale(e):
        return [f'v_mul_f32 {v(O(T,e)+j)}, {v(O(T,e)+j)}, {v(AL[T])}' for T in range(3) for j in range(4)]
    for i in range(NB - 1):
        vread(i)
    for x in rescale(0):
        p(x)
    for i, (e, hh) in enumerate(vfr):
        if i + NB - 1 < len(vfr):
            vread(i + NB - 1)
        rs = rescale(e + 1)[hh*6:hh*6+6] if e < 7 else []
        for T in range(3):
            p(f'v_mfma_f32_16x16x32_bf16 {v(O(T,e),4)}, {v(FB(i),4)}, {v(P(T,hh),4)}, {v(O(T,e),4)}')
            for x in rs[2*T:2*T+2]:
                p(x)
    if NOCOMP: del p.ins[mark1:]
    p(f's_add_u32 {s(sJ)}, {s(sJ)}, 1')
    p(f's_cmp_lt_u32 {s(sJ)}, 8')
    p('s_cbranch_scc1 L_kv')

    for op in ('v_permlane16_swap_b32', 'v_permlane32_swap_b32'):
        for T in range(3):
            p(f'v_mov_b32 {v(TM[T])}, {v(L[T])}')
        for T in range(3):
            p(f'{op} {v(L[T])}, {v(TM[T])}')
        for T in range(3):
            p(f'v_add_f32 {v(L[T])}, {v(L[T])}, {v(TM[T])}')
    for T in range(3):
        p(f'v_rcp_f32 {v(AL[T])}, {v(L[T])}')
    k = 0
    for T in range(3):
        for E in range(4):
            r = S0 + (k % 12) * 4
            k += 1
            for x in range(2):
                e = 2 * E + x
                for j in range(4):
                    p(f'v_mul_f32 {v(O(T,e)+j)}, {v(O(T,e)+j)}, {v(AL[T])}')
            for x in range(2):
                e = 2 * E + x
                p(f'v_cvt_pk_bf16_f32 {v(r+2*x)}, {v(O(T,e))}, {v(O(T,e)+1)}')
                p(f'v_cvt_pk_bf16_f32 {v(r+2*x+1)}, {v(O(T,e)+2)}, {v(O(T,e)+3)}')
            p(f'v_permlane16_swap_b32 {v(r)}, {v(r+2)}')
            p(f'v_permlane16_swap_b32 {v(r+1)}, {v(r+3)}')
            p(f'buffer_store_dwordx4 {v(r,4)}, {v(VOFFO)}, {s(SRD_O,4)}, {s(sO)} offen offset:{64*E}{ST_POL}')
        p(f's_add_u32 {s(sO)}, {s(sO)}, {TILE}')
    p(f's_add_u32 {s(sIT)}, {s(sIT)}, 1')
    p(f's_cmp_lt_u32 {s(sIT)}, {NH}')
    p('s_cbranch_scc1 L_head')
    p('s_waitcnt vmcnt(0)')
    p('L_end:')
    p('s_endpgm')

    p.insert_lgkm_waits()
    nn = p.insert_nops()
    p.check_all_edges()
    sys.stderr.write(f'vgprs={NVGPR} nop-states={nn} stats={dict(p.stats())}\n')

    head = open('cdna_kernels/' + NAME + '.s.ref').read().split('; Override launch')[0]
    out = head
    out += f'; @launch grid=({NWG},1,1) block=(256,1,1) lds={NSLOT*TILE}\n'
    out += f'''.amdgcn_target "amdgcn-amd-amdhsa--gfx950"
.text
.globl {NAME}_kernel
.p2align 8
.type {NAME}_kernel,@function
{NAME}_kernel:
'''
    out += p.render()
    out += f'''.section .rodata,"a"
.p2align 6
.amdhsa_kernel {NAME}_kernel
  .amdhsa_next_free_vgpr 256
  .amdhsa_next_free_sgpr 64
  .amdhsa_accum_offset 256
  .amdhsa_group_segment_fixed_size 0
  .amdhsa_kernarg_size 48
  .amdhsa_user_sgpr_count 2
  .amdhsa_user_sgpr_kernarg_segment_ptr 1
  .amdhsa_system_sgpr_workgroup_id_x 1
.end_amdhsa_kernel
'''
    return out

if __name__ == '__main__':
    opts = {}
    outp = 'cdna_kernels/' + NAME + '.s'
    for a in sys.argv[1:]:
        k, val = a.split('=', 1)
        if k == 'out':
            outp = val
        elif k in ('ldpol', 'stpol'):
            opts[k] = (' ' + val.replace('+', ' ')) if val else ''
        else:
            opts[k] = int(val)
    open(outp, 'w').write(gen(opts))
```

```python
import re

_REG_RE = re.compile(r'^(-|abs\()?([vsa])(\d+)\)?$')
_RNG_RE = re.compile(r'^(-)?([vsa])\[(\d+):(\d+)\]$')


def regs_of(op):
    op = op.strip()
    m = _REG_RE.match(op)
    if m:
        return {(m.group(2), int(m.group(3)))}
    m = _RNG_RE.match(op)
    if m:
        return {(m.group(2), i) for i in range(int(m.group(3)), int(m.group(4)) + 1)}
    if op in ('m0', 'vcc', 'exec', 'scc'):
        return {(op, 0)}
    return set()


TRANS = ('v_exp_f32', 'v_log_f32', 'v_rcp_f32', 'v_rsq_f32', 'v_sqrt_f32', 'v_sin_f32', 'v_cos_f32')


class Inst:
    def __init__(self, text, comment=None):
        self.text = text
        self.comment = comment
        self.label = None
        self.reads = set()
        self.writes = set()
        self.kind = 'other'
        self.srcC = set()
        self.srcAB = set()
        self.ws = 1
        t = text.strip()
        if t.endswith(':'):
            self.kind = 'label'
            self.ws = 0
            return
        if t.startswith(';WAITFOR'):
            self.kind = 'waitfor'
            self.ws = 0
            self.reads = regs_of(t.split()[1])
            return
        if t.startswith(';') or t.startswith('.') or t == '':
            self.kind = 'directive'
            self.ws = 0
            return
        parts = t.split(None, 1)
        self.op = parts[0]
        rest = parts[1] if len(parts) > 1 else ''
        ops = [o.strip() for o in rest.split(',')] if rest else []
        fixed = []
        depth = 0
        cur = ''
        for ch in rest:
            if ch == '[':
                depth += 1
            if ch == ']':
                depth -= 1
            if ch == ',' and depth == 0:
                fixed.append(cur.strip())
                cur = ''
            else:
                cur += ch
        if cur.strip():
            fixed.append(cur.strip())
        ops = fixed
        mods = ''
        if ops:
            last = ops[-1].split(None, 1)
            ops[-1] = last[0]
            mods = last[1] if len(last) > 1 else ''
        self.ops = ops
        self.mods = mods
        op = self.op
        R = [regs_of(o) for o in ops]
        if op.startswith('v_mfma'):
            self.kind = 'mfma'
            self.writes = R[0]
            self.srcAB = R[1] | R[2]
            self.srcC = R[3]
            self.reads = R[1] | R[2] | R[3]
            self.passes = 4 if '16x16x32' in op else 8
        elif op.startswith('v_permlane'):
            self.kind = 'permlane'
            self.reads = R[0] | R[1]
            self.writes = R[0] | R[1]
        elif op.startswith('v_cmp'):
            self.kind = 'valu'
            self.writes = R[0]
            self.reads = set().union(*R[1:])
        elif op.startswith('v_readfirstlane') or op.startswith('v_readlane'):
            self.kind = 'readlane'
            self.writes = R[0]
            self.reads = set().union(*R[1:])
        elif op.startswith('v_'):
            self.kind = 'trans' if op.replace('_e32', '').replace('_e64', '') in TRANS else 'valu'
            self.writes = R[0]
            self.reads = set().union(*R[1:]) if len(R) > 1 else set()
            if op.startswith('v_fmac') or op.startswith('v_pk_fmac'):
                self.reads |= R[0]
            if op.startswith('v_cndmask') and len(ops) == 3:
                self.reads |= {('vcc', 0)}
        elif op.startswith('ds_read'):
            self.kind = 'dsread'
            self.writes = R[0]
            self.reads = R[1]
        elif op.startswith('ds_write'):
            self.kind = 'dswrite'
            self.reads = set().union(*R)
        elif op.startswith('buffer_load'):
            if ' lds' in (' ' + mods):
                self.kind = 'dma'
                self.reads = set().union(*R) | {('m0', 0)}
            else:
                self.kind = 'vload'
                self.writes = R[0]
                self.reads = set().union(*R[1:])
        elif op.startswith('buffer_store') or op.startswith('buffer_atomic'):
            self.kind = 'vstore'
            self.reads = set().union(*R)
            self.data = R[0]
            self.wide = ('x4' in op or 'x3' in op)
        elif op == 's_nop':
            self.kind = 'nop'
            self.ws = int(ops[0]) + 1
        elif op == 's_waitcnt':
            self.kind = 'wait'
        elif op.startswith('s_cbranch') or op == 's_branch':
            self.kind = 'branch'
        elif op.startswith('s_cmp'):
            self.kind = 'salu'
            self.reads = set().union(*R)
            self.writes = {('scc', 0)}
        elif op.startswith('s_load') or op.startswith('s_memtime') or op.startswith('s_memrealtime'):
            self.kind = 'smem'
            self.writes = R[0]
            self.reads = set().union(*R[1:]) if len(R) > 1 else set()
        elif op.startswith('s_'):
            self.kind = 'salu'
            if ops:
                self.writes = R[0]
                self.reads = set().union(*R[1:]) if len(R) > 1 else set()

    def is_valu(self):
        return self.kind in ('valu', 'trans', 'permlane', 'readlane')


def vonly(s):
    return {r for r in s if r[0] in ('v', 'a')}


def sonly(s):
    return {r for r in s if r[0] in ('s', 'vcc')}


def needed_ws(p, c):
    n = 0
    if p.is_valu():
        pw = vonly(p.writes)
        if c.kind == 'mfma' and pw & c.reads:
            n = max(n, 2)
        if c.kind == 'permlane' and pw & c.reads:
            n = max(n, 2)
        if c.kind == 'readlane' and pw & c.reads:
            n = max(n, 1)
        if p.kind == 'trans' and c.is_valu() and c.kind != 'trans' and pw & c.reads:
            n = max(n, 1)
        if p.kind == 'trans' and c.kind == 'trans' and pw & c.reads:
            n = max(n, 1)
        ps = sonly(p.writes)
        if ps:
            if c.is_valu() and ps & c.reads:
                n = max(n, 2)
            if c.kind in ('dma', 'vload', 'vstore') and ps & c.reads:
                n = max(n, 5)
            if c.kind in ('salu', 'branch') and ps & c.reads:
                n = max(n, 4)
    if p.kind == 'mfma':
        big = {4: 8, 8: 12}[p.passes]
        ovl = {4: 6, 8: 10}[p.passes]
        war = {4: 3, 8: 7}[p.passes]
        D = p.writes
        if c.kind == 'mfma':
            if D & c.srcAB:
                n = max(n, big)
            if D & c.srcC:
                if c.srcC == D and c.passes == p.passes:
                    pass
                else:
                    n = max(n, ovl)
        elif c.is_valu():
            if D & (c.reads | c.writes):
                n = max(n, big)
            if p.srcC & c.writes:
                n = max(n, war)
        elif c.kind in ('dsread', 'dswrite', 'dma', 'vload', 'vstore'):
            if D & (c.reads | c.writes):
                n = max(n, big)
    if p.kind == 'salu' and ('m0', 0) in p.writes and c.kind == 'dma':
        n = max(n, 1)
    if p.kind == 'vstore' and p.wide:
        if c.is_valu() and p.data & c.writes:
            n = max(n, 2)
        elif (c.kind in ('dsread', 'vload', 'mfma')) and p.data & c.writes:
            n = max(n, 1)
    return n


class Prog:
    def __init__(self):
        self.ins = []

    def __call__(self, text, comment=None):
        for line in text.split('\n'):
            line = line.strip()
            if not line:
                continue
            self.ins.append(Inst(line, comment))

    def extend(self, insts):
        self.ins.extend(insts)

    def _lgkm(self, ins, pending, strict):
        out = []
        pending = list(pending)
        for i in ins:
            if i.kind == 'directive' and i.text.strip() == ';NOWAIT':
                pending = []
                continue
            if i.kind in ('label', 'branch'):
                if strict and pending:
                    raise RuntimeError('ds reads pending across label/branch: ' + i.text)
                out.append(i)
                continue
            if i.kind == 'wait' and 'lgkmcnt' in i.text:
                n = int(re.search(r'lgkmcnt\((\d+)\)', i.text).group(1))
                pending = pending[max(0, len(pending) - n):] if n > 0 else []
                out.append(i)
                continue
            if i.kind == 'salu' and i.op == 's_barrier' and strict and pending:
                raise RuntimeError('ds ops pending at barrier')
            touch = i.reads | i.writes
            last = -1
            for k, d in enumerate(pending):
                if d & touch:
                    last = k
            if last >= 0:
                n = len(pending) - 1 - last
                assert n <= 15
                out.append(Inst(f's_waitcnt lgkmcnt({n})'))
                pending = pending[last + 1:]
            if i.kind == 'waitfor':
                continue
            if i.kind == 'dsread':
                pending.append(frozenset(i.writes))
                assert len(pending) <= 15, 'too many outstanding ds ops'
            elif i.kind == 'dswrite':
                pending.append(frozenset())
                assert len(pending) <= 15
            out.append(i)
        return out, pending

    def insert_lgkm_waits(self):
        out = []
        k = 0
        ins = self.ins
        while k < len(ins):
            b = next((x for x in range(k, len(ins)) if ins[x].text.strip() == ';LOOP_BEGIN'), None)
            if b is None:
                o, pend = self._lgkm(ins[k:], [], True)
                out += o
                break
            o, pend = self._lgkm(ins[k:b], [], True)
            assert not pend
            out += o
            e = next(x for x in range(b, len(ins)) if ins[x].text.strip() == ';LOOP_END')
            body = ins[b:e + 1]
            _, end1 = self._lgkm(body, [], False)
            o, end2 = self._lgkm(body, end1, False)
            assert end1 == end2, 'loop pending state not steady'
            out += o
            k = e + 1
        self.ins = out

    def insert_nops(self):
        out = []
        nnop = 0
        for c in self.ins:
            if c.ws > 0 and c.kind not in ('nop',):
                need = 0
                dist = 0
                for p in reversed(out):
                    if dist >= 20:
                        break
                    if p.ws == 0:
                        continue
                    n = needed_ws(p, c)
                    if n - dist > need:
                        need = n - dist
                    dist += p.ws
                if need > 0:
                    out.append(Inst(f's_nop {need - 1}'))
                    nnop += need
            out.append(c)
        self.ins = out
        return nnop

    def check_edge(self, from_idx_pred, to_label):
        li = next(k for k, i in enumerate(self.ins) if i.kind == 'label' and i.text.strip() == to_label + ':')
        for bi, b in enumerate(self.ins):
            if b.kind == 'branch' and b.ops and b.ops[-1] == to_label:
                before = [x for x in self.ins[max(0, bi - 40):bi + 1] if x.ws > 0]
                after = [x for x in self.ins[li + 1:li + 41] if x.ws > 0]
                d_after = 0
                for c in after:
                    dist = d_after
                    for p in reversed(before):
                        if dist >= 20:
                            break
                        n = needed_ws(p, c)
                        if n > dist:
                            raise RuntimeError(f'hazard across branch to {to_label}: {p.text} -> {c.text} need {n} have {dist}')
                        dist += p.ws
                    d_after += c.ws
                    if d_after >= 20 or c.kind == 'branch' and c.op == 's_branch':
                        break

    def check_all_edges(self):
        for i in self.ins:
            if i.kind == 'label':
                self.check_edge(None, i.text.strip()[:-1])

    def render(self):
        lines = []
        for i in self.ins:
            if i.kind in ('label', 'directive'):
                lines.append(i.text)
            else:
                lines.append('    ' + i.text + (f'    ; {i.comment}' if i.comment else ''))
        return '\n'.join(lines) + '\n'

    def stats(self):
        from collections import Counter
        return Counter(i.kind for i in self.ins)


def v(i, n=1):
    return f'v{i}' if n == 1 else f'v[{i}:{i + n - 1}]'


def s(i, n=1):
    return f's{i}' if n == 1 else f's[{i}:{i + n - 1}]'


def a(i, n=1):
    return f'a{i}' if n == 1 else f'a[{i}:{i + n - 1}]'


def vcost(text):
    op = text.split()[0]
    if op in TRANS or op.startswith('v_permlane'):
        return 8
    if op.startswith('v_'):
        return 4
    return 0


def weave(mf, fill, lead=0):
    tot = sum(max(vcost(x), 1) for x in fill)
    out = []
    k = 0
    acc = 0
    n = len(mf)
    for i, slot in enumerate(mf):
        out += slot
        target = tot * (i + 1) / n
        while k < len(fill) and acc + max(vcost(fill[k]), 1) / 2 <= target:
            out.append(fill[k])
            acc += max(vcost(fill[k]), 1)
            k += 1
    out += fill[k:]
    return out


def weave2(mfmas, pinned, fill, free, nfill=None, start=0):
    n = len(mfmas)
    if nfill is None:
        nfill = n
    tot = sum(vcost(x) for x in fill)
    out = []
    k = 0
    acc = 0
    free = list(free)

    def take_free(gap):
        if free:
            f = free[0]
            if isinstance(f, tuple):
                if f[0] > gap:
                    return None
                free.pop(0)
                return f[1]
            free.pop(0)
            return f
        return None

    for i, m in enumerate(mfmas):
        out.append(m)
        pend = list(pinned.get(i, []))
        if pend:
            out.append(pend.pop(0))
        else:
            f = take_free(i)
            if f:
                out.append(f)
        if start <= i < nfill:
            target = tot * (i + 1 - start) / (nfill - start)
            while k < len(fill) and acc + vcost(fill[k]) / 2 <= target:
                x = fill[k]
                out.append(x)
                acc += vcost(x)
                k += 1
                if vcost(x) == 8:
                    if pend:
                        out.append(pend.pop(0))
                    else:
                        f = take_free(i)
                        if f:
                            out.append(f)
        out += pend
    assert k == len(fill), 'fill left over'
    for f in free:
        out.append(f[1] if isinstance(f, tuple) else f)
    return out


def weave3(mfmas, pinned, fill, free, nfill=None):
    n = len(mfmas)
    if nfill is None:
        nfill = n
    tot = sum(vcost(x) for x in fill)
    out = []
    k = 0
    acc = 0
    free = list(free)
    for i, m in enumerate(mfmas):
        out.append(m)
        pend = list(pinned.get(i, []))
        if pend:
            out += pend
        elif free:
            f = free[0]
            if not isinstance(f, tuple):
                out.append(free.pop(0))
            elif f[0] <= i:
                out.append(free.pop(0)[1])
        if i < nfill:
            target = tot * (i + 1) / nfill
            while k < len(fill) and acc + vcost(fill[k]) / 2 <= target:
                out.append(fill[k])
                acc += vcost(fill[k])
                k += 1
    assert k == len(fill), 'fill left over'
    if free:
        import sys
        sys.stderr.write(f'weave3: {len(free)} aux instructions did not fit in shadows\n')
    for f in free:
        out.append(f[1] if isinstance(f, tuple) else f)
    return out
```

```python
import sys, struct, math
sys.path.insert(0, 'work')
from asmgen import *

NAME = 'standalone__gqa_softmax__near_ridge'

def f32bits(x):
    return struct.unpack('<I', struct.pack('<f', x))[0]

def gen(opts):
    NWG = 256
    NH = 4
    LD_POL = opts.get('ldpol', ' nt')
    ST_POL = opts.get('stpol', '')
    NB = 8
    PD = opts.get('pd', 6)
    STAMP = opts.get('stamp', 0)
    PROF = opts.get('prof', 0)
    DBG = opts.get('dbg', 0)
    NODMA = opts.get('nodma', 0)
    NOST = opts.get('nost', 0)
    THR = opts.get('thr', 8)
    EARLY = opts.get('early', 4)
    BTAIL = opts.get('btail', 3)
    WEVERY = opts.get('wevery', 2)
    DMAPOS = opts.get('dmapos', 0)
    TILE = 16384
    NSLOT = 7
    RING = NSLOT * TILE
    QAREA = RING
    C = 128 ** -0.5 * math.log2(math.e)

    O0 = 0
    def O(T, e): return O0 + (T * 8 + e) * 4
    SB = [96, 120]
    def S(z, T, k=0): return SB[z] + T * 8 + k
    P0 = 144
    def P(T): return P0 + 4 * T
    CI0 = 156
    def CI(T): return CI0 + 4 * T
    FB0 = 168
    def FB(f): return FB0 + (f % NB) * 4
    LQ = [200, 204, 208]; ONES = 212
    D = [216, 217, 218]; TM = [220, 222, 224]; MX = [226, 227]
    KA = [228 + i for i in range(4)]; VA = [232 + i for i in range(8)]
    KB, VB, VOFFK, VOFFV, VOFFO, QD0, QB, OWB = 240, 241, 242, 243, 244, 245, 246, 247
    AQ = 0; AH = 48
    def Q(T, s_): return AQ + (T * 4 + s_) * 4

    SRD_Q, SRD_K, SRD_V, SRD_O = 8, 12, 16, 20
    (sW4K, sRK, sRV, sFV, sFK, sFKP, sKV, sQ, sJ, sH, sC, sT0, sTHR, sT1, sNIC, sSPEC, sQM) = \
        (28, 29, 30, 31, 32, 33, 34, 35, 44, 45, 46, 47, 24, 25, 26, 27, 4)

    p = Prog()

    def dma_list(srd, voff):
        return [f'buffer_load_dwordx4 {v(voff)}, {s(srd,4)}, {s(sKV)} offen offset:{n*1024}{LD_POL} lds' for n in range(4)]

    def qdma(tmp):
        setup = [f'v_xor_b32 {v(tmp+k)}, {k*64}, {v(QD0)}' for k in range(1, 4)]
        reg = [QD0, tmp + 1, tmp + 2, tmp + 3]
        o = []
        for gi in range(3):
            for k in range(4):
                g = []
                if k == 0:
                    g.append(f's_add_u32 m0, {s(sQM)}, {gi*4096}')
                    g.append('s_nop 0')
                g.append(f'buffer_load_dwordx4 {v(reg[k])}, {s(SRD_Q,4)}, {s(sQ)} offen offset:{k*1024}{LD_POL} lds')
                if k == 3:
                    g.append(f's_add_u32 {s(sQ)}, {s(sQ)}, {4096 if gi < 2 else 49152 - 8192}')
                o.append(g)
        return setup, o

    def frag_reads(f):
        f %= 32
        blk, i = divmod(f, 8)
        if blk in (0, 2):
            n = (2 if blk == 0 else 0) + i // 4
            s_ = i % 4
            return [f'ds_read_b128 {v(FB(f),4)}, {v(KA[s_])} offset:{n*1024}']
        hh = 0 if blk == 1 else 1
        return [f'ds_read_b64_tr_b16 {v(FB(f),2)}, {v(VA[i])} offset:{(2*hh)*1024}',
                f'ds_read_b64_tr_b16 {v(FB(f)+2,2)}, {v(VA[i])} offset:{(2*hh+1)*1024}']

    def pins(blk):
        pinned = {}
        for i in range(8):
            f = blk * 8 + i
            r = frag_reads(f + PD)
            pinned[3 * i] = [r[0]]
            if len(r) > 1:
                pinned[3 * i + 1] = [r[1]]
            if (f + 1) % WEVERY == 0:
                pinned[3 * i + 2] = [f';WAITFOR {v(FB(f+WEVERY),4)}']
        return pinned

    ones_mfma = [f'v_mfma_f32_16x16x32_bf16 {v(LQ[T],4)}, {v(ONES,4)}, {v(P(T),4)}, {v(LQ[T],4)}' for T in range(3)]

    def blockA(blk, zc, free):
        zn = 1 - zc
        mf = []
        for i in range(8):
            f = blk * 8 + i
            n2, s_ = divmod(i, 4)
            for T in range(3):
                d = S(zn, T, 4 * n2)
                cc = v(CI(T), 4) if s_ == 0 else v(d, 4)
                mf.append(f'v_mfma_f32_16x16x32_bf16 {v(d,4)}, {v(FB(f),4)}, {a(Q(T,s_),4)}, {cc}')
        fill = []
        pend = None
        for q in range(4):
            for T in range(3):
                fill.append(f'v_exp_f32 {v(S(zc,T,2*q))}, {v(S(zc,T,2*q))}')
                fill.append(f'v_exp_f32 {v(S(zc,T,2*q+1))}, {v(S(zc,T,2*q+1))}')
                if pend:
                    fill.append(pend)
                pend = f'v_cvt_pk_bf16_f32 {v(P(T)+q)}, {v(S(zc,T,2*q))}, {v(S(zc,T,2*q+1))}'
        fill.append(pend)
        return weave3(mf, pins(blk), fill, free)

    def blockB(blk, zc, pre, post, free):
        zn = 1 - zc
        mf = []
        for e in range(8):
            f = blk * 8 + e
            for T in range(3):
                mf.append(f'v_mfma_f32_16x16x32_bf16 {v(O(T,e),4)}, {v(FB(f),4)}, {v(P(T),4)}, {v(O(T,e),4)}')
        mf += ones_mfma
        ch = [[S(zn, T, k) for T in range(3) for k in range(4)], [S(zn, T, 4 + k) for T in range(3) for k in range(4)]]
        mul = [[f'v_mul_f32 {v(x)}, {s(sC)}, {v(x)}' for x in ch[c]] for c in range(2)]
        seq = [[], []]
        for c in range(2):
            x = ch[c]
            seq[c].append(f'v_max3_f32 {v(MX[c])}, {v(x[0])}, {v(x[1])}, {v(x[2])}')
            for k in range(3, 11, 2):
                seq[c].append(f'v_max3_f32 {v(MX[c])}, {v(MX[c])}, {v(x[k])}, {v(x[k+1])}')
        fill = pre + mul[0]
        for k in range(12):
            fill.append(mul[1][k])
            if k % 2 == 1 and k // 2 < 5:
                fill.append(seq[0][k // 2])
        rest = seq[1] + [f'v_max3_f32 {v(MX[0])}, {v(MX[0])}, {v(ch[0][11])}, {v(ch[1][11])}',
                         f'v_max_f32 {v(MX[0])}, {v(MX[0])}, {v(MX[1])}',
                         f'v_cmp_lt_f32 vcc, {s(sTHR)}, {v(MX[0])}']
        post = list(post)
        for x in rest:
            fill.append(x)
            if post:
                fill.append(post.pop(0))
        fill += post
        return weave3(mf, pins(blk), fill, free, nfill=len(mf) - BTAIL)

    def ka_update():
        return [f'v_add_u32 {v(KA[0])}, {s(sRK)}, {v(KB)}'] + [f'v_xor_b32 {v(KA[i])}, {i*64}, {v(KA[0])}' for i in range(1, 4)]
    def va_update():
        return [f'v_add_u32 {v(VA[0])}, {s(sRV)}, {v(VB)}'] + [f'v_xor_b32 {v(VA[i])}, {i*32}, {v(VA[0])}' for i in range(1, 8)]
    def wrapinc(dst, src):
        return [f's_add_u32 {s(dst)}, {s(src)}, {TILE}', f's_sub_u32 {s(sT1)}, {s(src)}, {RING-TILE}', f's_min_u32 {s(dst)}, {s(dst)}, {s(sT1)}']

    p(f's_cmp_ge_u32 s2, {NWG}')
    p('s_cbranch_scc1 L_end')
    p('s_load_dwordx8 s[36:43], s[0:1], 0')
    if STAMP:
        p('s_memrealtime s[48:49]')
        p('s_memtime s[50:51]')
        p(f's_load_dwordx2 s[60:61], s[0:1], {32 if DBG else 40}')
    a_, b, c_, d, e_, w = 1, 2, 3, 4, 5, 6
    p(f'v_lshrrev_b32 {v(w)}, 6, v0', 'wave id')
    p(f'v_and_b32 v0, 63, v0', 'lane')
    p(f'v_readfirstlane_b32 {s(sT0)}, {v(w)}')
    p(f'v_lshrrev_b32 {v(a_)}, 4, v0', 't = g = lane>>4')
    p(f'v_and_b32 {v(b)}, 15, v0', 'pos = rho = lane&15')
    p(f'v_lshl_add_u32 {v(c_)}, {v(w)}, 4, {v(a_)}', '16w+t')
    p(f'v_lshl_add_u32 {v(d)}, {v(w)}, 2, {v(a_)}', '4w+t')
    p(f'v_xor_b32 {v(d)}, {v(d)}, {v(b)}')
    p(f'v_lshlrev_b32 {v(d)}, 4, {v(d)}')
    p(f'v_lshl_add_u32 {v(VOFFK)}, {v(c_)}, 8, {v(d)}')
    p(f'v_and_b32 {v(d)}, 1, {v(w)}')
    p(f'v_lshlrev_b32 {v(d)}, 2, {v(d)}')
    p(f'v_add_u32 {v(d)}, {v(d)}, {v(a_)}')
    p(f'v_lshlrev_b32 {v(d)}, 1, {v(d)}', '8(w&1)+2t')
    p(f'v_xor_b32 {v(d)}, {v(d)}, {v(b)}')
    p(f'v_lshlrev_b32 {v(d)}, 4, {v(d)}')
    p(f'v_lshl_add_u32 {v(VOFFV)}, {v(c_)}, 8, {v(d)}')
    p(f'v_mul_u32_u24 {v(e_)}, 12288, {v(w)}')
    p(f'v_xor_b32 {v(d)}, {v(a_)}, {v(b)}', 'g^rho')
    p(f'v_lshlrev_b32 {v(d)}, 4, {v(d)}')
    p(f'v_lshl_add_u32 {v(c_)}, {v(a_)}, 8, {v(d)}')
    p(f'v_add_u32 {v(QD0)}, {v(c_)}, {v(e_)}')
    qsetup, qgroups = qdma(SB[1])
    for x in qsetup: p(x)
    p(f's_lshl_b32 {s(sW4K)}, {s(sT0)}, 12')
    p(f's_mul_i32 {s(sQM)}, {s(sT0)}, 12288')
    p(f's_add_u32 {s(sQM)}, {s(sQM)}, {QAREA}')
    p(f's_mul_i32 s5, s2, {NH*49152}')
    p(f's_mul_i32 s6, s2, {NH*131072}')
    for srd, nbytes in ((SRD_Q, NH * 49152), (SRD_K, NH * 131072), (SRD_V, NH * 131072), (SRD_O, NH * 49152)):
        z = (NODMA and srd in (SRD_K, SRD_V, SRD_Q)) or (NOST and srd == SRD_O)
        p(f's_mov_b32 {s(srd+2)}, {0 if z else nbytes}')
        p(f's_mov_b32 {s(srd+3)}, 0x20000')
    p(f's_mov_b32 {s(sKV)}, 0')
    p(f's_mov_b32 {s(sQ)}, 0')
    p(f's_mov_b32 m0, {s(sW4K)}')
    p('s_waitcnt lgkmcnt(0)')
    for srd, src, off in ((SRD_K, 38, 6), (SRD_Q, 36, 5), (SRD_V, 40, 6), (SRD_O, 42, 5)):
        p(f's_add_u32 {s(srd)}, {s(src)}, s{off}')
        p(f's_addc_u32 {s(srd+1)}, {s(src+1)}, 0')
        p(f's_and_b32 {s(srd+1)}, {s(srd+1)}, 0xffff')
        if srd == SRD_K:
            for x in dma_list(SRD_K, VOFFK): p(x)
        if srd == SRD_Q:
            for g in qgroups:
                for x in g: p(x)
    p(f's_add_u32 {s(SRD_K)}, {s(SRD_K)}, {TILE}')
    p(f's_addc_u32 {s(SRD_K+1)}, {s(SRD_K+1)}, 0')
    if not NODMA:
        p(f's_mov_b32 {s(SRD_K+2)}, {NH*131072 - TILE}')
    p(f's_add_u32 m0, {s(sW4K)}, {TILE}')
    for x in dma_list(SRD_V, VOFFV): p(x)
    p(f's_add_u32 m0, {s(sW4K)}, {2*TILE}')
    for x in dma_list(SRD_K, VOFFK): p(x)
    p(f's_mov_b32 {s(sKV)}, {TILE}')
    p(f'v_add_u32 {v(e_)}, {QAREA}, {v(e_)}')
    p(f'v_lshl_add_u32 {v(e_)}, {v(b)}, 8, {v(e_)}', 'QAREA + w*12288 + rho*256')
    p(f'v_add_u32 {v(QB)}, {v(e_)}, {v(d)}')
    p(f'v_lshrrev_b32 {v(c_)}, 1, {v(a_)}')
    p(f'v_xor_b32 {v(c_)}, {v(c_)}, {v(b)}')
    p(f'v_lshl_add_u32 {v(e_)}, {v(c_)}, 4, {v(e_)}')
    p(f'v_and_b32 {v(c_)}, 1, {v(a_)}')
    p(f'v_lshl_add_u32 {v(OWB)}, {v(c_)}, 3, {v(e_)}')
    p(f'v_mul_u32_u24 {v(e_)}, 12288, {v(w)}')
    p(f'v_lshl_add_u32 {v(VOFFO)}, v0, 4, {v(e_)}')
    p(f'v_lshrrev_b32 {v(c_)}, 2, {v(b)}', 'rho>>2')
    p(f'v_and_b32 {v(w)}, 3, {v(b)}', 'rho&3 (= c too)')
    p(f'v_lshl_add_u32 {v(e_)}, {v(w)}, 8, {v(d)}')
    p(f'v_lshl_add_u32 {v(KB)}, {v(c_)}, 12, {v(e_)}')
    p(f'v_and_b32 {v(e_)}, 1, {v(a_)}')
    p(f'v_lshl_add_u32 {v(e_)}, {v(e_)}, 2, {v(c_)}', '4(g&1)+r')
    p(f'v_lshlrev_b32 {v(e_)}, 5, {v(e_)}')
    p(f'v_lshl_add_u32 {v(e_)}, {v(w)}, 3, {v(e_)}')
    p(f'v_lshl_add_u32 {v(e_)}, {v(c_)}, 8, {v(e_)}')
    p(f'v_lshl_add_u32 {v(VB)}, {v(a_)}, 12, {v(e_)}')
    p(f's_mov_b32 {s(sC)}, 0x{f32bits(C):08x}')
    p(f's_mov_b32 {s(sNIC)}, 0x{f32bits(-1.0 / C):08x}')
    p(f's_mov_b32 {s(sTHR)}, 0x{f32bits(THR):08x}')
    p(f's_mov_b32 {s(sRK)}, 0')
    p(f's_mov_b32 {s(sRV)}, {TILE}')
    p(f's_mov_b32 {s(sFV)}, {3*TILE}')
    p(f's_mov_b32 {s(sFK)}, {4*TILE}')
    p(f's_mov_b32 {s(sFKP)}, {2*TILE}')
    p(f's_mov_b32 {s(sJ)}, 7')
    p(f's_mov_b32 {s(sH)}, -1')
    p(f's_mov_b32 {s(sSPEC)}, 0')
    for x in ka_update() + va_update(): p(x)
    for i in range(4):
        p(f'v_mov_b32 {v(ONES+i)}, 0x3f803f80')
    p('s_waitcnt vmcnt(8)')
    for i in range(12):
        p(f'v_mov_b64 {v(SB[1]+2*i,2)}, 0')
    p('s_barrier')
    p(f's_add_u32 m0, {s(sW4K)}, {3*TILE}')
    for f in range(16, 16 + PD):
        for x in frag_reads(f): p(x)
    for x in dma_list(SRD_V, VOFFV): p(x)
    p(f's_add_u32 m0, {s(sW4K)}, {4*TILE}')
    for x in dma_list(SRD_K, VOFFK)[:{0: 0, 1: 2, 2: 4, 3: 0}[DMAPOS]]: p(x)
    p('s_waitcnt lgkmcnt(0)')
    if PROF:
        p('s_memtime s[64:65]')
        p('s_waitcnt lgkmcnt(0)')
        for k in range(1, 4):
            p(f's_mov_b32 s{64+2*k}, s64')
        for k in range(8):
            p(f's_mov_b32 s{80+k}, 0')
        p('s_sub_u32 s86, s64, s50', 'startup cycles')
    p('s_branch L_qread')

    def prof_acc():
        if PROF:
            p('s_memtime s[76:77]')
            p('s_waitcnt lgkmcnt(0)')
            for k in range(6):
                p(f's_sub_u32 s90, s{66+2*k}, s{64+2*k}')
                p(f's_add_u32 s{80+k}, s{80+k}, s90')
            p('s_mov_b32 s64, s76')

    dv = dma_list(SRD_V, VOFFV)
    dk = dma_list(SRD_K, VOFFK)
    if DMAPOS == 0:
        fa0 = [(2, dv[0]), (13, dv[1])]
        fb0 = [(3, dv[2]), (13, dv[3]), f's_add_u32 m0, {s(sFK)}, {s(sW4K)}']
        fa1 = [(2, dk[0]), (13, dk[1])]
        fb1 = [(3, dk[2]), (13, dk[3])]
    else:
        fa0 = [(2, dv[0]), (9, dv[1]), (17, dv[2])]
        fb0 = [(3, dv[3]), f's_add_u32 m0, {s(sFK)}, {s(sW4K)}', (11, dk[0]), (19, dk[1])]
        fa1 = [(2, dk[2]), (13, dk[3])]
        fb1 = []
    burst0 = []; burst1 = []
    if DMAPOS == 2:
        fa0 = []; fb0 = []; fa1 = ['s_nop 0', 's_nop 0']; fb1 = []
        burst0 = dv + [f's_add_u32 m0, {s(sFK)}, {s(sW4K)}'] + dk
    if DMAPOS == 3:
        fa0 = []; fb0 = [f's_add_u32 m0, {s(sFK)}, {s(sW4K)}']; fa1 = ['s_nop 0', 's_nop 0']; fb1 = []
        burst0 = dv; burst1 = dk
    p(';LOOP_BEGIN')
    p('.p2align 6')
    p('L_loop:')
    prof_acc()
    p('s_waitcnt vmcnt(8)')
    p('L_sync:')
    p('s_barrier')
    if PROF: p('s_memtime s[66:67]')
    for x in burst0: p(x)
    for x in blockA(0, 0, fa0): p(x)
    if PROF: p('s_memtime s[68:69]')
    for x in blockB(1, 0, ka_update(), [], fb0 + [f's_cmp_eq_u32 {s(sJ)}, 7']): p(x)
    if PROF: p('s_memtime s[70:71]')
    p('s_cbranch_vccnz L_rareY')
    p('L_retY:')
    p('s_cbranch_scc1 L_qread')
    p('L_qdone:')
    for x in burst1: p(x)
    for x in blockA(2, 1, [f's_add_u32 {s(sJ)}, {s(sJ)}, 1', fa1[0], f's_lshr_b32 {s(sSPEC)}, {s(sSPEC)}, 1',
                           f's_mov_b32 {s(sRK)}, {s(sFKP)}', fa1[1], f's_mov_b32 {s(sFKP)}, {s(sFK)}']): p(x)
    if PROF: p('s_memtime s[72:73]')
    va = va_update()
    ptr = [(2, f's_mov_b32 {s(sRV)}, {s(sFV)}')] + wrapinc(sFV, sFK)
    ptr2 = wrapinc(sFK, sFV) + [f's_add_u32 {s(sKV)}, {s(sKV)}, {TILE}', f's_add_u32 m0, {s(sFV)}, {s(sW4K)}', f's_cmp_eq_u32 {s(sJ)}, 8']
    if DMAPOS == 0:
        fr = ptr[:1] + fb1[:1] + ptr[1:] + fb1[1:] + ptr2
    else:
        fr = ptr + ptr2
    for x in blockB(3, 1, va[:6], va[6:], fr): p(x)
    if PROF: p('s_memtime s[74:75]')
    p('s_cbranch_scc1 L_boundary')
    p('s_cbranch_vccnz L_rareX')
    p('L_retX:')
    p(f's_bitcmp0_b32 {s(sSPEC)}, 0')
    p('s_cbranch_scc1 L_loop')
    p(';LOOP_END')

    def store_run(q0, q1):
        last = None
        for q in range(q0, q1):
            h, i = divmod(q, 12)
            if (h, i // 4) != last:
                p(f's_mov_b32 {s(sT0)}, {h*49152 + (i//4)*4096}')
                last = (h, i // 4)
            src = a(AH + q * 4, 4) if h < NH - 1 else v(O0 + i * 4, 4)
            p(f'buffer_store_dwordx4 {src}, {v(VOFFO)}, {s(SRD_O,4)}, {s(sT0)} offen offset:{(i%4)*1024}{ST_POL}')

    prof_acc()
    if PROF:
        p(f's_cmp_eq_u32 {s(sH)}, 0')
        p('s_cselect_b32 s91, s81, s91', 'A0 time of the first iteration')
    NE = 8 - EARLY
    if NE > 0:
        p(f's_cmp_gt_u32 {s(sJ)}, 1')
        p('s_cbranch_scc1 L_early0')
    p('s_waitcnt vmcnt(20)')
    p('s_branch L_sync')
    bounds = [round(36 * k / NE) for k in range(NE + 1)] if NE else []
    for k in range(NE):
        p(f'L_early{k}:')
        if k < NE - 1:
            p(f's_cmp_lg_u32 {s(sJ)}, {EARLY+k}')
            p(f's_cbranch_scc1 L_early{k+1}')
        p(f's_waitcnt vmcnt({8 + (bounds[k] - bounds[k-1] if k else 0)})')
        store_run(bounds[k], bounds[k + 1])
        p('s_branch L_sync')

    p('L_qread:')
    t0 = SB[0]
    for k in range(1, 4):
        p(f'v_xor_b32 {v(t0+k)}, {k*64}, {v(QB)}')
    p('s_waitcnt lgkmcnt(2)')
    for T in range(3):
        for s_ in range(4):
            p(f'ds_read_b128 {a(Q(T,s_),4)}, {v(QB if s_ == 0 else t0+s_)} offset:{T*4096}')
    for i in range(6):
        p(f'v_mov_b64 {v(CI0+2*i,2)}, 0')
    p('s_waitcnt lgkmcnt(0)')
    p('s_branch L_qdone')

    def unit_max(z):
        o = []
        for T in range(3):
            o.append(f'v_max3_f32 {v(D[T])}, {v(S(z,T,0))}, {v(S(z,T,1))}, {v(S(z,T,2))}')
        for k in (3, 5):
            for T in range(3):
                o.append(f'v_max3_f32 {v(D[T])}, {v(D[T])}, {v(S(z,T,k))}, {v(S(z,T,k+1))}')
        for T in range(3):
            o.append(f'v_max_f32 {v(D[T])}, {v(D[T])}, {v(S(z,T,7))}')
        for op in ('v_permlane16_swap_b32', 'v_permlane32_swap_b32'):
            for T in range(3):
                o.append(f'v_mov_b32 {v(TM[T])}, {v(D[T])}')
            for T in range(3):
                o.append(f'{op} {v(D[T])}, {v(TM[T])}')
            for T in range(3):
                o.append(f'v_max_f32 {v(D[T])}, {v(D[T])}, {v(TM[T])}')
        return o
    def unit_shift(z):
        o = []
        for T in range(3):
            for k in range(8):
                o.append(f'v_sub_f32 {v(S(z,T,k))}, {v(S(z,T,k))}, {v(D[T])}')
            for k in range(4):
                o.append(f'v_fmac_f32 {v(CI(T)+k)}, {s(sNIC)}, {v(D[T])}')
        return o

    p('L_boundary:')
    p(f's_cmp_lt_i32 {s(sH)}, 0')
    p('s_cbranch_scc1 L_newhead')
    W = [OWB] + [SB[1] + e for e in range(1, 8)]
    R = [SB[1] + 8 + k for k in range(4)]
    for e in range(1, 8):
        p(f'v_xor_b32 {v(W[e])}, {e*32}, {v(OWB)}')
    p(f'v_add_u32 {v(R[0])}, {QAREA}, {v(QD0)}')
    for k in range(1, 4):
        p(f'v_xor_b32 {v(R[k])}, {k*64}, {v(R[0])}')
    for T in range(3):
        p(f'v_rcp_f32 {v(TM[T])}, {v(LQ[T])}')
    p('s_waitcnt lgkmcnt(0)')
    for T in range(3):
        for e in range(8):
            r = O(T, e)
            for i in range(2):
                p(f'v_pk_mul_f32 {v(r+2*i,2)}, {v(r+2*i,2)}, {v(TM[T],2)} op_sel_hi:[1,0]')
        if T > 0:
            p('s_waitcnt lgkmcnt(4)')
        for e in range(8):
            r = O(T, e)
            p(f'v_cvt_pk_bf16_f32 {v(r)}, {v(r)}, {v(r+1)}')
            p(f'v_cvt_pk_bf16_f32 {v(r+1)}, {v(r+2)}, {v(r+3)}')
            if e > 0:
                p(f'ds_write_b64 {v(W[e-1])}, {v(O(T,e-1),2)} offset:{T*4096}')
        p(f'ds_write_b64 {v(W[7])}, {v(O(T,7),2)} offset:{T*4096}')
    p(f's_cmp_eq_u32 {s(sH)}, {NH-1}')
    p('s_waitcnt lgkmcnt(0)')
    p('s_cbranch_scc1 L_final')
    for h in range(NH - 1):
        if h < NH - 2:
            p(f's_cmp_lg_u32 {s(sH)}, {h}')
            p(f's_cbranch_scc1 L_hold{h+1}')
        for i in range(12):
            p(f'ds_read_b128 {a(AH + h*48 + i*4, 4)}, {v(R[i%4])} offset:{i*1024}')
        p(';NOWAIT')
        if h < NH - 2:
            p('s_branch L_newhead')
            p(f'L_hold{h+1}:')
    p('L_newhead:')
    qsetup, qgroups = qdma(SB[1] + 12)
    zs = [f'v_mov_b64 {v(O0+2*i,2)}, 0' for i in range(48)] + [f'v_mov_b64 {v(LQ[0]+2*i,2)}, 0' for i in range(6)]
    um = unit_max(0)
    work = qsetup + um + zs + unit_shift(0)
    first_dma = len(qsetup) + len(um)
    step = (len(work) - first_dma) // 12
    for i, x in enumerate(work):
        if i == first_dma:
            p('s_waitcnt lgkmcnt(0)')
        if i >= first_dma and (i - first_dma) % step == 0 and qgroups:
            for y in qgroups.pop(0): p(y)
        p(x)
    assert not qgroups
    p(f's_add_u32 m0, {s(sFV)}, {s(sW4K)}')
    p(f's_add_u32 {s(sH)}, {s(sH)}, 1')
    p(f's_mov_b32 {s(sJ)}, 0')
    p(f's_cmp_eq_u32 {s(sH)}, {NH-1}')
    p(f's_cselect_b32 {s(sSPEC)}, {(0xff << EARLY) & 0xff | 2}, 2')
    prof_acc()
    p('s_waitcnt vmcnt(20)')
    p('s_branch L_sync')

    def rare(z, lab, ret):
        p(f'{lab}:')
        for x in unit_max(z): p(x)
        for T in range(3):
            p(f'v_max_f32 {v(D[T])}, 0, {v(D[T])}')
        for T in range(3):
            p(f'v_exp_f32 {v(TM[T])}, -{v(D[T])}')
        for x in unit_shift(z): p(x)
        for T in range(3):
            for i in range(32):
                p(f'v_mul_f32 {v(O(T,0)+i)}, {v(O(T,0)+i)}, {v(TM[T])}')
        for T in range(3):
            p(f'v_mul_f32 {v(LQ[T])}, {v(LQ[T])}, {v(TM[T])}')
        p(f's_branch {ret}')
    rare(0, 'L_rareX', 'L_retX')
    rare(1, 'L_rareY', 'L_retY')

    p('L_final:')
    if PROF:
        p('s_memtime s[92:93]')
    for i in range(12):
        p(f'ds_read_b128 {v(O0 + i*4, 4)}, {v(R[i%4])} offset:{i*1024}')
    if NE == 0:
        store_run(0, 36)
    store_run(36, 48)
    p('s_waitcnt vmcnt(0)')
    if STAMP and DBG:
        p('s_memrealtime s[52:53]')
        p('s_memtime s[54:55]')
        p('s_mov_b32 s56, s60\ns_and_b32 s57, s61, 0xffff\ns_mov_b32 s58, 256\ns_mov_b32 s59, 0x20000')
        p('s_waitcnt lgkmcnt(0)')
        p('s_not_b32 s62, s48')
        p('v_mov_b32 v0, s52\nv_mov_b32 v1, s62\nv_mov_b32 v8, 0\ns_mov_b64 exec, 1')
        p('buffer_atomic_umax v0, v8, s[56:59], 0 offen')
        p('buffer_atomic_umax v1, v8, s[56:59], 0 offen offset:4')
        p(f's_lshr_b32 s63, {s(sW4K)}, 12')
        p('s_add_u32 s63, s63, s2')
        p('s_cmp_lg_u32 s63, 0')
        p('s_cbranch_scc1 L_dbgdone')
        p('s_sub_u32 s88, s52, s48')
        p('s_sub_u32 s89, s54, s50')
        p('s_sub_u32 s87, s54, s92')
        for i in range(12):
            p(f'v_mov_b32 v{10+i}, s{80+i}')
        p('buffer_store_dwordx4 v[10:13], v8, s[56:59], 0 offen offset:8')
        p('buffer_store_dwordx4 v[14:17], v8, s[56:59], 0 offen offset:24')
        p('buffer_store_dwordx4 v[18:21], v8, s[56:59], 0 offen offset:40')
        p('L_dbgdone:')
        p('s_waitcnt vmcnt(0)')
    elif STAMP:
        p('s_memrealtime s[52:53]')
        p('s_memtime s[54:55]')
        p('s_mov_b32 s56, s60\ns_and_b32 s57, s61, 0xffff\ns_mov_b32 s58, 0x100000\ns_mov_b32 s59, 0x20000')
        p(f's_lshl_b32 s62, s2, 7\ns_lshr_b32 s63, {s(sW4K)}, 7\ns_add_u32 s62, s62, s63')
        p('s_waitcnt lgkmcnt(0)')
        p('s_getreg_b32 s51, hwreg(HW_REG_XCC_ID)')
        p('s_getreg_b32 s55, hwreg(HW_REG_HW_ID)')
        for i in range(8):
            p(f'v_mov_b32 v{i}, s{48+i}')
        p('v_mov_b32 v8, 0\ns_mov_b64 exec, 1')
        p('buffer_store_dwordx4 v[0:3], v8, s[56:59], s62 offen')
        p('buffer_store_dwordx4 v[4:7], v8, s[56:59], s62 offen offset:16')
        if PROF:
            p('s_sub_u32 s87, s54, s92')
            p('s_add_u32 s62, s62, 0x10000')
            for i in range(8):
                p(f'v_mov_b32 v{10+i}, s{80+i}')
            p('buffer_store_dwordx4 v[10:13], v8, s[56:59], s62 offen')
            p('buffer_store_dwordx4 v[14:17], v8, s[56:59], s62 offen offset:16')
        p('s_waitcnt vmcnt(0)')
    p('L_end:')
    p('s_endpgm')

    body = [i for i in p.ins]
    b0 = next(k for k, i in enumerate(body) if i.text.strip() == ';LOOP_BEGIN')
    b1 = next(k for k, i in enumerate(body) if i.text.strip() == ';LOOP_END')
    for r in VA:
        ev = ['w' if (('v', r) in i.writes) else 'r' for i in body[b0:b1] if ('v', r) in i.writes or (i.kind == 'dsread' and ('v', r) in i.reads)]
        assert ev == ['r'] * 4 + ['w'], (r, ev)
    for k, r in enumerate(KA):
        ev = [('w' if (('v', r) in i.writes) else i.mods) for i in body[b0:b1] if ('v', r) in i.writes or (i.kind == 'dsread' and ('v', r) in i.reads)]
        wi = ev.index('w')
        assert all(x in ('offset:2048', 'offset:3072') for x in ev[:wi]) and ev[wi+1:wi+3] == ['offset:0', 'offset:1024'], (r, ev)

    p.insert_lgkm_waits()
    nn = p.insert_nops()
    p.check_all_edges()
    sys.stderr.write(f'nop-states={nn} stats={dict(p.stats())}\n')

    head = open('cdna_kernels/' + NAME + '.s.ref').read().split('; Override launch')[0]
    out = head
    out += f'; @launch grid=({NWG},1,1) block=(256,1,1) lds=163840\n'
    out += f'''.amdgcn_target "amdgcn-amd-amdhsa--gfx950"
.text
.globl {NAME}_kernel
.p2align 8
.type {NAME}_kernel,@function
{NAME}_kernel:
'''
    out += p.render()
    out += f'''.section .rodata,"a"
.p2align 6
.amdhsa_kernel {NAME}_kernel
  .amdhsa_next_free_vgpr 512
  .amdhsa_next_free_sgpr 96
  .amdhsa_accum_offset 256
  .amdhsa_group_segment_fixed_size 0
  .amdhsa_kernarg_size 48
  .amdhsa_user_sgpr_count 2
  .amdhsa_user_sgpr_kernarg_segment_ptr 1
  .amdhsa_system_sgpr_workgroup_id_x 1
.end_amdhsa_kernel
'''
    return out

if __name__ == '__main__':
    opts = {}
    outp = 'cdna_kernels/' + NAME + '.s'
    for x in sys.argv[1:]:
        k, val = x.split('=', 1)
        if k == 'out':
            outp = val
        elif k in ('ldpol', 'stpol'):
            opts[k] = (' ' + val.replace('+', ' ')) if val else ''
        elif k == 'thr':
            opts[k] = float(val)
        else:
            opts[k] = int(val)
    open(outp, 'w').write(gen(opts))
```

```python
import sys, struct, math
sys.path.insert(0, 'work')
from asmgen import *

NAME = 'standalone__gqa_softmax__near_ridge'

def f32bits(x):
    return struct.unpack('<I', struct.pack('<f', x))[0]

def gen(opts):
    NWG = 256
    NH = 4
    LD_POL = opts.get('ldpol', ' nt')
    ST_POL = opts.get('stpol', '')
    NB = 8
    PD = opts.get('pd', 6)
    STAMP = opts.get('stamp', 0)
    PROF = opts.get('prof', 0)
    DBG = opts.get('dbg', 0)
    NODMA = opts.get('nodma', 0)
    NOST = opts.get('nost', 0)
    THR = opts.get('thr', 8)
    EARLY = opts.get('early', 4)
    BTAIL = opts.get('btail', 3)
    WEVERY = opts.get('wevery', 2)
    DMAPOS = opts.get('dmapos', 0)
    TILE = 16384
    NSLOT = 7
    RING = NSLOT * TILE
    QAREA = RING
    C = 128 ** -0.5 * math.log2(math.e)

    O0 = 0
    def O(T, e): return O0 + (T * 8 + e) * 4
    SB = [96, 120]
    def S(z, T, k=0): return SB[z] + T * 8 + k
    P0 = 144
    def P(T): return P0 + 4 * T
    CI0 = 156
    def CI(T): return CI0 + 4 * T
    FB0 = 168
    def FB(f): return FB0 + (f % NB) * 4
    LQ = [200, 204, 208]; ONES = 212
    D = [216, 217, 218]; TM = [220, 222, 224]; MX = [226, 227]
    KA = [228 + i for i in range(4)]; VA = [232 + i for i in range(8)]
    KB, VB, VOFFK, VOFFV, VOFFO, QD0, QB, OWB = 240, 241, 242, 243, 244, 245, 246, 247
    AQ = 0; AH = 48
    def Q(T, s_): return AQ + (T * 4 + s_) * 4

    SRD_Q, SRD_K, SRD_V, SRD_O = 8, 12, 16, 20
    (sW4K, sRK, sRV, sFV, sFK, sFKP, sKV, sQ, sJ, sH, sC, sT0, sTHR, sT1, sNIC, sSPEC, sQM) = \
        (28, 29, 30, 31, 32, 33, 34, 35, 44, 45, 46, 47, 24, 25, 26, 27, 4)

    p = Prog()

    def dma_list(srd, voff):
        return [f'buffer_load_dwordx4 {v(voff)}, {s(srd,4)}, {s(sKV)} offen offset:{n*1024}{LD_POL} lds' for n in range(4)]

    def qdma(tmp):
        setup = [f'v_xor_b32 {v(tmp+k)}, {k*64}, {v(QD0)}' for k in range(1, 4)]
        reg = [QD0, tmp + 1, tmp + 2, tmp + 3]
        o = []
        for gi in range(3):
            for k in range(4):
                g = []
                if k == 0:
                    g.append(f's_add_u32 m0, {s(sQM)}, {gi*4096}')
                    g.append('s_nop 0')
                g.append(f'buffer_load_dwordx4 {v(reg[k])}, {s(SRD_Q,4)}, {s(sQ)} offen offset:{k*1024}{LD_POL} lds')
                if k == 3:
                    g.append(f's_add_u32 {s(sQ)}, {s(sQ)}, {4096 if gi < 2 else 49152 - 8192}')
                o.append(g)
        return setup, o

    def frag_reads(f):
        f %= 32
        blk, i = divmod(f, 8)
        if blk in (0, 2):
            n = (2 if blk == 0 else 0) + i // 4
            s_ = i % 4
            return [f'ds_read_b128 {v(FB(f),4)}, {v(KA[s_])} offset:{n*1024}']
        hh = 0 if blk == 1 else 1
        return [f'ds_read_b64_tr_b16 {v(FB(f),2)}, {v(VA[i])} offset:{(2*hh)*1024}',
                f'ds_read_b64_tr_b16 {v(FB(f)+2,2)}, {v(VA[i])} offset:{(2*hh+1)*1024}']

    def pins(blk):
        pinned = {}
        for i in range(8):
            f = blk * 8 + i
            r = frag_reads(f + PD)
            pinned[3 * i] = [r[0]]
            if len(r) > 1:
                pinned[3 * i + 1] = [r[1]]
            if (f + 1) % WEVERY == 0:
                pinned[3 * i + 2] = [f';WAITFOR {v(FB(f+WEVERY),4)}']
        return pinned

    ones_mfma = [f'v_mfma_f32_16x16x32_bf16 {v(LQ[T],4)}, {v(ONES,4)}, {v(P(T),4)}, {v(LQ[T],4)}' for T in range(3)]

    def blockA(blk, zc, free):
        zn = 1 - zc
        mf = []
        for i in range(8):
            f = blk * 8 + i
            n2, s_ = divmod(i, 4)
            for T in range(3):
                d = S(zn, T, 4 * n2)
                cc = v(CI(T), 4) if s_ == 0 else v(d, 4)
                mf.append(f'v_mfma_f32_16x16x32_bf16 {v(d,4)}, {v(FB(f),4)}, {a(Q(T,s_),4)}, {cc}')
        fill = []
        pend = None
        for q in range(4):
            for T in range(3):
                fill.append(f'v_exp_f32 {v(S(zc,T,2*q))}, {v(S(zc,T,2*q))}')
                fill.append(f'v_exp_f32 {v(S(zc,T,2*q+1))}, {v(S(zc,T,2*q+1))}')
                if pend:
                    fill.append(pend)
                pend = f'v_cvt_pk_bf16_f32 {v(P(T)+q)}, {v(S(zc,T,2*q))}, {v(S(zc,T,2*q+1))}'
        fill.append(pend)
        return weave3(mf, pins(blk), fill, free)

    def blockB(blk, zc, pre, post, free):
        zn = 1 - zc
        mf = []
        for e in range(8):
            f = blk * 8 + e
            for T in range(3):
                mf.append(f'v_mfma_f32_16x16x32_bf16 {v(O(T,e),4)}, {v(FB(f),4)}, {v(P(T),4)}, {v(O(T,e),4)}')
        mf += ones_mfma
        ch = [[S(zn, T, k) for T in range(3) for k in range(4)], [S(zn, T, 4 + k) for T in range(3) for k in range(4)]]
        mul = [[f'v_mul_f32 {v(x)}, {s(sC)}, {v(x)}' for x in ch[c]] for c in range(2)]
        seq = [[], []]
        for c in range(2):
            x = ch[c]
            seq[c].append(f'v_max3_f32 {v(MX[c])}, {v(x[0])}, {v(x[1])}, {v(x[2])}')
            for k in range(3, 11, 2):
                seq[c].append(f'v_max3_f32 {v(MX[c])}, {v(MX[c])}, {v(x[k])}, {v(x[k+1])}')
        fill = pre + mul[0]
        for k in range(12):
            fill.append(mul[1][k])
            if k % 2 == 1 and k // 2 < 5:
                fill.append(seq[0][k // 2])
        rest = seq[1] + [f'v_max3_f32 {v(MX[0])}, {v(MX[0])}, {v(ch[0][11])}, {v(ch[1][11])}',
                         f'v_max_f32 {v(MX[0])}, {v(MX[0])}, {v(MX[1])}',
                         f'v_cmp_lt_f32 vcc, {s(sTHR)}, {v(MX[0])}']
        post = list(post)
        for x in rest:
            fill.append(x)
            if post:
                fill.append(post.pop(0))
        fill += post
        return weave3(mf, pins(blk), fill, free, nfill=len(mf) - BTAIL)

    def ka_update():
        return [f'v_add_u32 {v(KA[0])}, {s(sRK)}, {v(KB)}'] + [f'v_xor_b32 {v(KA[i])}, {i*64}, {v(KA[0])}' for i in range(1, 4)]
    def va_update():
        return [f'v_add_u32 {v(VA[0])}, {s(sRV)}, {v(VB)}'] + [f'v_xor_b32 {v(VA[i])}, {i*32}, {v(VA[0])}' for i in range(1, 8)]
    def wrapinc(dst, src):
        return [f's_add_u32 {s(dst)}, {s(src)}, {TILE}', f's_sub_u32 {s(sT1)}, {s(src)}, {RING-TILE}', f's_min_u32 {s(dst)}, {s(dst)}, {s(sT1)}']

    p(f's_cmp_ge_u32 s2, {NWG}')
    p('s_cbranch_scc1 L_end')
    p('s_load_dwordx8 s[36:43], s[0:1], 0')
    if STAMP:
        p('s_memrealtime s[48:49]')
        p('s_memtime s[50:51]')
        p(f's_load_dwordx2 s[60:61], s[0:1], {32 if DBG else 40}')
    a_, b, c_, d, e_, w = 1, 2, 3, 4, 5, 6
    p(f'v_lshrrev_b32 {v(w)}, 6, v0', 'wave id')
    p(f'v_and_b32 v0, 63, v0', 'lane')
    p(f'v_readfirstlane_b32 {s(sT0)}, {v(w)}')
    p(f'v_lshrrev_b32 {v(a_)}, 4, v0', 't = g = lane>>4')
    p(f'v_and_b32 {v(b)}, 15, v0', 'pos = rho = lane&15')
    p(f'v_lshl_add_u32 {v(c_)}, {v(w)}, 4, {v(a_)}', '16w+t')
    p(f'v_lshl_add_u32 {v(d)}, {v(w)}, 2, {v(a_)}', '4w+t')
    p(f'v_xor_b32 {v(d)}, {v(d)}, {v(b)}')
    p(f'v_lshlrev_b32 {v(d)}, 4, {v(d)}')
    p(f'v_lshl_add_u32 {v(VOFFK)}, {v(c_)}, 8, {v(d)}')
    p(f'v_and_b32 {v(d)}, 1, {v(w)}')
    p(f'v_lshlrev_b32 {v(d)}, 2, {v(d)}')
    p(f'v_add_u32 {v(d)}, {v(d)}, {v(a_)}')
    p(f'v_lshlrev_b32 {v(d)}, 1, {v(d)}', '8(w&1)+2t')
    p(f'v_xor_b32 {v(d)}, {v(d)}, {v(b)}')
    p(f'v_lshlrev_b32 {v(d)}, 4, {v(d)}')
    p(f'v_lshl_add_u32 {v(VOFFV)}, {v(c_)}, 8, {v(d)}')
    p(f'v_mul_u32_u24 {v(e_)}, 12288, {v(w)}')
    p(f'v_xor_b32 {v(d)}, {v(a_)}, {v(b)}', 'g^rho')
    p(f'v_lshlrev_b32 {v(d)}, 4, {v(d)}')
    p(f'v_lshl_add_u32 {v(c_)}, {v(a_)}, 8, {v(d)}')
    p(f'v_add_u32 {v(QD0)}, {v(c_)}, {v(e_)}')
    qsetup, qgroups = qdma(SB[1])
    for x in qsetup: p(x)
    p(f's_lshl_b32 {s(sW4K)}, {s(sT0)}, 12')
    p(f's_mul_i32 {s(sQM)}, {s(sT0)}, 12288')
    p(f's_add_u32 {s(sQM)}, {s(sQM)}, {QAREA}')
    p(f's_mul_i32 s5, s2, {NH*49152}')
    p(f's_mul_i32 s6, s2, {NH*131072}')
    for srd, nbytes in ((SRD_Q, NH * 49152), (SRD_K, NH * 131072), (SRD_V, NH * 131072), (SRD_O, NH * 49152)):
        z = (NODMA and srd in (SRD_K, SRD_V, SRD_Q)) or (NOST and srd == SRD_O)
        p(f's_mov_b32 {s(srd+2)}, {0 if z else nbytes}')
        p(f's_mov_b32 {s(srd+3)}, 0x20000')
    p(f's_mov_b32 {s(sKV)}, 0')
    p(f's_mov_b32 {s(sQ)}, 0')
    p(f's_mov_b32 m0, {s(sW4K)}')
    p('s_waitcnt lgkmcnt(0)')
    for srd, src, off in ((SRD_K, 38, 6), (SRD_Q, 36, 5), (SRD_V, 40, 6), (SRD_O, 42, 5)):
        p(f's_add_u32 {s(srd)}, {s(src)}, s{off}')
        p(f's_addc_u32 {s(srd+1)}, {s(src+1)}, 0')
        p(f's_and_b32 {s(srd+1)}, {s(srd+1)}, 0xffff')
        if srd == SRD_K:
            for x in dma_list(SRD_K, VOFFK): p(x)
        if srd == SRD_Q:
            for g in qgroups:
                for x in g: p(x)
    p(f's_add_u32 {s(SRD_K)}, {s(SRD_K)}, {TILE}')
    p(f's_addc_u32 {s(SRD_K+1)}, {s(SRD_K+1)}, 0')
    if not NODMA:
        p(f's_mov_b32 {s(SRD_K+2)}, {NH*131072 - TILE}')
    p(f's_add_u32 m0, {s(sW4K)}, {TILE}')
    for x in dma_list(SRD_V, VOFFV): p(x)
    p(f's_add_u32 m0, {s(sW4K)}, {2*TILE}')
    for x in dma_list(SRD_K, VOFFK): p(x)
    p(f's_mov_b32 {s(sKV)}, {TILE}')
    p(f'v_add_u32 {v(e_)}, {QAREA}, {v(e_)}')
    p(f'v_lshl_add_u32 {v(e_)}, {v(b)}, 8, {v(e_)}', 'QAREA + w*12288 + rho*256')
    p(f'v_add_u32 {v(QB)}, {v(e_)}, {v(d)}')
    p(f'v_lshrrev_b32 {v(c_)}, 1, {v(a_)}')
    p(f'v_xor_b32 {v(c_)}, {v(c_)}, {v(b)}')
    p(f'v_lshl_add_u32 {v(e_)}, {v(c_)}, 4, {v(e_)}')
    p(f'v_and_b32 {v(c_)}, 1, {v(a_)}')
    p(f'v_lshl_add_u32 {v(OWB)}, {v(c_)}, 3, {v(e_)}')
    p(f'v_mul_u32_u24 {v(e_)}, 12288, {v(w)}')
    p(f'v_lshl_add_u32 {v(VOFFO)}, v0, 4, {v(e_)}')
    p(f'v_lshrrev_b32 {v(c_)}, 2, {v(b)}', 'rho>>2')
    p(f'v_and_b32 {v(w)}, 3, {v(b)}', 'rho&3 (= c too)')
    p(f'v_lshl_add_u32 {v(e_)}, {v(w)}, 8, {v(d)}')
    p(f'v_lshl_add_u32 {v(KB)}, {v(c_)}, 12, {v(e_)}')
    p(f'v_and_b32 {v(e_)}, 1, {v(a_)}')
    p(f'v_lshl_add_u32 {v(e_)}, {v(e_)}, 2, {v(c_)}', '4(g&1)+r')
    p(f'v_lshlrev_b32 {v(e_)}, 5, {v(e_)}')
    p(f'v_lshl_add_u32 {v(e_)}, {v(w)}, 3, {v(e_)}')
    p(f'v_lshl_add_u32 {v(e_)}, {v(c_)}, 8, {v(e_)}')
    p(f'v_lshl_add_u32 {v(VB)}, {v(a_)}, 12, {v(e_)}')
    p(f's_mov_b32 {s(sC)}, 0x{f32bits(C):08x}')
    p(f's_mov_b32 {s(sNIC)}, 0x{f32bits(-1.0 / C):08x}')
    p(f's_mov_b32 {s(sTHR)}, 0x{f32bits(THR):08x}')
    p(f's_mov_b32 {s(sRK)}, 0')
    p(f's_mov_b32 {s(sRV)}, {TILE}')
    p(f's_mov_b32 {s(sFV)}, {3*TILE}')
    p(f's_mov_b32 {s(sFK)}, {4*TILE}')
    p(f's_mov_b32 {s(sFKP)}, {2*TILE}')
    p(f's_mov_b32 {s(sJ)}, 7')
    p(f's_mov_b32 {s(sH)}, -1')
    p(f's_mov_b32 {s(sSPEC)}, 0')
    for x in ka_update() + va_update(): p(x)
    for i in range(4):
        p(f'v_mov_b32 {v(ONES+i)}, 0x3f803f80')
    p('s_waitcnt vmcnt(8)')
    for i in range(12):
        p(f'v_mov_b64 {v(SB[1]+2*i,2)}, 0')
    p('s_barrier')
    p(f's_add_u32 m0, {s(sW4K)}, {3*TILE}')
    for f in range(16, 16 + PD):
        for x in frag_reads(f): p(x)
    for x in dma_list(SRD_V, VOFFV): p(x)
    p(f's_add_u32 m0, {s(sW4K)}, {4*TILE}')
    for x in dma_list(SRD_K, VOFFK)[:{0: 0, 1: 2, 2: 4, 3: 0}[DMAPOS]]: p(x)
    p('s_waitcnt lgkmcnt(0)')
    if PROF:
        p('s_memtime s[64:65]')
        p('s_waitcnt lgkmcnt(0)')
        for k in range(1, 4):
            p(f's_mov_b32 s{64+2*k}, s64')
        for k in range(8):
            p(f's_mov_b32 s{80+k}, 0')
        p('s_sub_u32 s86, s64, s50', 'startup cycles')
    if DBG == 2:
        p('s_memrealtime s[64:65]')
        p('s_waitcnt lgkmcnt(0)')
    p('s_branch L_qread')

    def prof_acc():
        if PROF:
            p('s_memtime s[76:77]')
            p('s_waitcnt lgkmcnt(0)')
            for k in range(6):
                p(f's_sub_u32 s90, s{66+2*k}, s{64+2*k}')
                p(f's_add_u32 s{80+k}, s{80+k}, s90')
            p('s_mov_b32 s64, s76')

    dv = dma_list(SRD_V, VOFFV)
    dk = dma_list(SRD_K, VOFFK)
    if DMAPOS == 0:
        fa0 = [(2, dv[0]), (13, dv[1])]
        fb0 = [(3, dv[2]), (13, dv[3]), f's_add_u32 m0, {s(sFK)}, {s(sW4K)}']
        fa1 = [(2, dk[0]), (13, dk[1])]
        fb1 = [(3, dk[2]), (13, dk[3])]
    else:
        fa0 = [(2, dv[0]), (9, dv[1]), (17, dv[2])]
        fb0 = [(3, dv[3]), f's_add_u32 m0, {s(sFK)}, {s(sW4K)}', (11, dk[0]), (19, dk[1])]
        fa1 = [(2, dk[2]), (13, dk[3])]
        fb1 = []
    burst0 = []; burst1 = []
    if DMAPOS == 2:
        fa0 = []; fb0 = []; fa1 = ['s_nop 0', 's_nop 0']; fb1 = []
        burst0 = dv + [f's_add_u32 m0, {s(sFK)}, {s(sW4K)}'] + dk
    if DMAPOS == 3:
        fa0 = []; fb0 = [f's_add_u32 m0, {s(sFK)}, {s(sW4K)}']; fa1 = ['s_nop 0', 's_nop 0']; fb1 = []
        burst0 = dv; burst1 = dk
    p(';LOOP_BEGIN')
    p('.p2align 6')
    p('L_loop:')
    prof_acc()
    p('s_waitcnt vmcnt(8)')
    p('L_sync:')
    p('s_barrier')
    if PROF: p('s_memtime s[66:67]')
    for x in burst0: p(x)
    for x in blockA(0, 0, fa0): p(x)
    if PROF: p('s_memtime s[68:69]')
    for x in blockB(1, 0, ka_update(), [], fb0 + [f's_cmp_eq_u32 {s(sJ)}, 7']): p(x)
    if PROF: p('s_memtime s[70:71]')
    p('s_cbranch_vccnz L_rareY')
    p('L_retY:')
    p('s_cbranch_scc1 L_qread')
    p('L_qdone:')
    for x in burst1: p(x)
    for x in blockA(2, 1, [f's_add_u32 {s(sJ)}, {s(sJ)}, 1', fa1[0], f's_lshr_b32 {s(sSPEC)}, {s(sSPEC)}, 1',
                           f's_mov_b32 {s(sRK)}, {s(sFKP)}', fa1[1], f's_mov_b32 {s(sFKP)}, {s(sFK)}']): p(x)
    if PROF: p('s_memtime s[72:73]')
    va = va_update()
    ptr = [(2, f's_mov_b32 {s(sRV)}, {s(sFV)}')] + wrapinc(sFV, sFK)
    ptr2 = wrapinc(sFK, sFV) + [f's_add_u32 {s(sKV)}, {s(sKV)}, {TILE}', f's_add_u32 m0, {s(sFV)}, {s(sW4K)}', f's_cmp_eq_u32 {s(sJ)}, 8']
    if DMAPOS == 0:
        fr = ptr[:1] + fb1[:1] + ptr[1:] + fb1[1:] + ptr2
    else:
        fr = ptr + ptr2
    for x in blockB(3, 1, va[:6], va[6:], fr): p(x)
    if PROF: p('s_memtime s[74:75]')
    p('s_cbranch_scc1 L_boundary')
    p('s_cbranch_vccnz L_rareX')
    p('L_retX:')
    p(f's_bitcmp0_b32 {s(sSPEC)}, 0')
    p('s_cbranch_scc1 L_loop')
    p(';LOOP_END')

    def store_run(q0, q1):
        last = None
        for q in range(q0, q1):
            h, i = divmod(q, 12)
            if (h, i // 4) != last:
                p(f's_mov_b32 {s(sT0)}, {h*49152 + (i//4)*4096}')
                last = (h, i // 4)
            src = a(AH + q * 4, 4) if h < NH - 1 else v(O0 + i * 4, 4)
            p(f'buffer_store_dwordx4 {src}, {v(VOFFO)}, {s(SRD_O,4)}, {s(sT0)} offen offset:{(i%4)*1024}{ST_POL}')

    prof_acc()
    if PROF:
        p(f's_cmp_eq_u32 {s(sH)}, 0')
        p('s_cselect_b32 s91, s81, s91', 'A0 time of the first iteration')
    NE = 8 - EARLY
    if NE > 0:
        p(f's_cmp_gt_u32 {s(sJ)}, 1')
        p('s_cbranch_scc1 L_early0')
    p('s_waitcnt vmcnt(20)')
    p('s_branch L_sync')
    bounds = [round(36 * k / NE) for k in range(NE + 1)] if NE else []
    for k in range(NE):
        p(f'L_early{k}:')
        if k < NE - 1:
            p(f's_cmp_lg_u32 {s(sJ)}, {EARLY+k}')
            p(f's_cbranch_scc1 L_early{k+1}')
        if DBG == 2 and k == 0:
            p('s_memrealtime s[72:73]')
            p('s_waitcnt lgkmcnt(0)')
        p(f's_waitcnt vmcnt({8 + (bounds[k] - bounds[k-1] if k else 0)})')
        store_run(bounds[k], bounds[k + 1])
        p('s_branch L_sync')

    p('L_qread:')
    t0 = SB[0]
    for k in range(1, 4):
        p(f'v_xor_b32 {v(t0+k)}, {k*64}, {v(QB)}')
    p('s_waitcnt lgkmcnt(2)')
    for T in range(3):
        for s_ in range(4):
            p(f'ds_read_b128 {a(Q(T,s_),4)}, {v(QB if s_ == 0 else t0+s_)} offset:{T*4096}')
    for i in range(6):
        p(f'v_mov_b64 {v(CI0+2*i,2)}, 0')
    p('s_waitcnt lgkmcnt(0)')
    p('s_branch L_qdone')

    def unit_max(z):
        o = []
        for T in range(3):
            o.append(f'v_max3_f32 {v(D[T])}, {v(S(z,T,0))}, {v(S(z,T,1))}, {v(S(z,T,2))}')
        for k in (3, 5):
            for T in range(3):
                o.append(f'v_max3_f32 {v(D[T])}, {v(D[T])}, {v(S(z,T,k))}, {v(S(z,T,k+1))}')
        for T in range(3):
            o.append(f'v_max_f32 {v(D[T])}, {v(D[T])}, {v(S(z,T,7))}')
        for op in ('v_permlane16_swap_b32', 'v_permlane32_swap_b32'):
            for T in range(3):
                o.append(f'v_mov_b32 {v(TM[T])}, {v(D[T])}')
            for T in range(3):
                o.append(f'{op} {v(D[T])}, {v(TM[T])}')
            for T in range(3):
                o.append(f'v_max_f32 {v(D[T])}, {v(D[T])}, {v(TM[T])}')
        return o
    def unit_shift(z):
        o = []
        for T in range(3):
            for k in range(8):
                o.append(f'v_sub_f32 {v(S(z,T,k))}, {v(S(z,T,k))}, {v(D[T])}')
            for k in range(4):
                o.append(f'v_fmac_f32 {v(CI(T)+k)}, {s(sNIC)}, {v(D[T])}')
        return o

    p('L_boundary:')
    p(f's_cmp_lt_i32 {s(sH)}, 0')
    p('s_cbranch_scc1 L_newhead')
    W = [OWB] + [SB[1] + e for e in range(1, 8)]
    R = [SB[1] + 8 + k for k in range(4)]
    for e in range(1, 8):
        p(f'v_xor_b32 {v(W[e])}, {e*32}, {v(OWB)}')
    p(f'v_add_u32 {v(R[0])}, {QAREA}, {v(QD0)}')
    for k in range(1, 4):
        p(f'v_xor_b32 {v(R[k])}, {k*64}, {v(R[0])}')
    for T in range(3):
        p(f'v_rcp_f32 {v(TM[T])}, {v(LQ[T])}')
    p('s_waitcnt lgkmcnt(0)')
    for T in range(3):
        for e in range(8):
            r = O(T, e)
            for i in range(2):
                p(f'v_pk_mul_f32 {v(r+2*i,2)}, {v(r+2*i,2)}, {v(TM[T],2)} op_sel_hi:[1,0]')
        if T > 0:
            p('s_waitcnt lgkmcnt(4)')
        for e in range(8):
            r = O(T, e)
            p(f'v_cvt_pk_bf16_f32 {v(r)}, {v(r)}, {v(r+1)}')
            p(f'v_cvt_pk_bf16_f32 {v(r+1)}, {v(r+2)}, {v(r+3)}')
            if e > 0:
                p(f'ds_write_b64 {v(W[e-1])}, {v(O(T,e-1),2)} offset:{T*4096}')
        p(f'ds_write_b64 {v(W[7])}, {v(O(T,7),2)} offset:{T*4096}')
    p(f's_cmp_eq_u32 {s(sH)}, {NH-1}')
    p('s_waitcnt lgkmcnt(0)')
    p('s_cbranch_scc1 L_final')
    for h in range(NH - 1):
        if h < NH - 2:
            p(f's_cmp_lg_u32 {s(sH)}, {h}')
            p(f's_cbranch_scc1 L_hold{h+1}')
        for i in range(12):
            p(f'ds_read_b128 {a(AH + h*48 + i*4, 4)}, {v(R[i%4])} offset:{i*1024}')
        p(';NOWAIT')
        if h < NH - 2:
            p('s_branch L_newhead')
            p(f'L_hold{h+1}:')
    p('L_newhead:')
    qsetup, qgroups = qdma(SB[1] + 12)
    zs = [f'v_mov_b64 {v(O0+2*i,2)}, 0' for i in range(48)] + [f'v_mov_b64 {v(LQ[0]+2*i,2)}, 0' for i in range(6)]
    um = unit_max(0)
    work = qsetup + um + zs + unit_shift(0)
    first_dma = len(qsetup) + len(um)
    step = (len(work) - first_dma) // 12
    for i, x in enumerate(work):
        if i == first_dma:
            p('s_waitcnt lgkmcnt(0)')
        if i >= first_dma and (i - first_dma) % step == 0 and qgroups:
            for y in qgroups.pop(0): p(y)
        p(x)
    assert not qgroups
    p(f's_add_u32 m0, {s(sFV)}, {s(sW4K)}')
    p(f's_add_u32 {s(sH)}, {s(sH)}, 1')
    p(f's_mov_b32 {s(sJ)}, 0')
    p(f's_cmp_eq_u32 {s(sH)}, {NH-1}')
    p(f's_cselect_b32 {s(sSPEC)}, {(0xff << EARLY) & 0xff | 2}, 2')
    if DBG == 2:
        p('s_mov_b32 s66, s68')
        p('s_mov_b32 s68, s70')
        p('s_memrealtime s[70:71]')
        p('s_waitcnt lgkmcnt(0)')
    prof_acc()
    p('s_waitcnt vmcnt(20)')
    p('s_branch L_sync')

    def rare(z, lab, ret):
        p(f'{lab}:')
        for x in unit_max(z): p(x)
        for T in range(3):
            p(f'v_max_f32 {v(D[T])}, 0, {v(D[T])}')
        for T in range(3):
            p(f'v_exp_f32 {v(TM[T])}, -{v(D[T])}')
        for x in unit_shift(z): p(x)
        for T in range(3):
            for i in range(32):
                p(f'v_mul_f32 {v(O(T,0)+i)}, {v(O(T,0)+i)}, {v(TM[T])}')
        for T in range(3):
            p(f'v_mul_f32 {v(LQ[T])}, {v(LQ[T])}, {v(TM[T])}')
        p(f's_branch {ret}')
    rare(0, 'L_rareX', 'L_retX')
    rare(1, 'L_rareY', 'L_retY')

    p('L_final:')
    if DBG == 2:
        p('s_memrealtime s[74:75]')
        p('s_waitcnt lgkmcnt(0)')
        if NE == 0: p('s_mov_b32 s72, s74')
    if PROF:
        p('s_memtime s[92:93]')
    for i in range(12):
        p(f'ds_read_b128 {v(O0 + i*4, 4)}, {v(R[i%4])} offset:{i*1024}')
    if NE == 0:
        store_run(0, 36)
    store_run(36, 48)
    p('s_waitcnt vmcnt(0)')
    if STAMP and DBG == 2:
        p('s_memrealtime s[52:53]')
        p('s_mov_b32 s56, s60\ns_and_b32 s57, s61, 0xffff\ns_mov_b32 s58, 256\ns_mov_b32 s59, 0x20000')
        p('s_waitcnt lgkmcnt(0)')
        p('v_mov_b32 v8, 0\ns_mov_b64 exec, 1')
        for k, r in enumerate((48, 64, 66, 68, 70, 72, 74, 52)):
            p(f'v_mov_b32 v0, s{r}')
            p(f'v_not_b32 v1, s{r}')
            p(f'buffer_atomic_umax v1, v8, s[56:59], 0 offen offset:{8*k}')
            p(f'buffer_atomic_umax v0, v8, s[56:59], 0 offen offset:{8*k+4}')
            p('s_nop 1')
        p('s_waitcnt vmcnt(0)')
    elif STAMP and DBG:
        p('s_memrealtime s[52:53]')
        p('s_memtime s[54:55]')
        p('s_mov_b32 s56, s60\ns_and_b32 s57, s61, 0xffff\ns_mov_b32 s58, 256\ns_mov_b32 s59, 0x20000')
        p('s_waitcnt lgkmcnt(0)')
        p('s_not_b32 s62, s48')
        p('v_mov_b32 v0, s52\nv_mov_b32 v1, s62\nv_mov_b32 v8, 0\ns_mov_b64 exec, 1')
        p('buffer_atomic_umax v0, v8, s[56:59], 0 offen')
        p('buffer_atomic_umax v1, v8, s[56:59], 0 offen offset:4')
        p(f's_lshr_b32 s63, {s(sW4K)}, 12')
        p('s_add_u32 s63, s63, s2')
        p('s_cmp_lg_u32 s63, 0')
        p('s_cbranch_scc1 L_dbgdone')
        p('s_sub_u32 s88, s52, s48')
        p('s_sub_u32 s89, s54, s50')
        p('s_sub_u32 s87, s54, s92')
        for i in range(12):
            p(f'v_mov_b32 v{10+i}, s{80+i}')
        p('buffer_store_dwordx4 v[10:13], v8, s[56:59], 0 offen offset:8')
        p('buffer_store_dwordx4 v[14:17], v8, s[56:59], 0 offen offset:24')
        p('buffer_store_dwordx4 v[18:21], v8, s[56:59], 0 offen offset:40')
        p('L_dbgdone:')
        p('s_waitcnt vmcnt(0)')
    elif STAMP:
        p('s_memrealtime s[52:53]')
        p('s_memtime s[54:55]')
        p('s_mov_b32 s56, s60\ns_and_b32 s57, s61, 0xffff\ns_mov_b32 s58, 0x100000\ns_mov_b32 s59, 0x20000')
        p(f's_lshl_b32 s62, s2, 7\ns_lshr_b32 s63, {s(sW4K)}, 7\ns_add_u32 s62, s62, s63')
        p('s_waitcnt lgkmcnt(0)')
        p('s_getreg_b32 s51, hwreg(HW_REG_XCC_ID)')
        p('s_getreg_b32 s55, hwreg(HW_REG_HW_ID)')
        for i in range(8):
            p(f'v_mov_b32 v{i}, s{48+i}')
        p('v_mov_b32 v8, 0\ns_mov_b64 exec, 1')
        p('buffer_store_dwordx4 v[0:3], v8, s[56:59], s62 offen')
        p('buffer_store_dwordx4 v[4:7], v8, s[56:59], s62 offen offset:16')
        if PROF:
            p('s_sub_u32 s87, s54, s92')
            p('s_add_u32 s62, s62, 0x10000')
            for i in range(8):
                p(f'v_mov_b32 v{10+i}, s{80+i}')
            p('buffer_store_dwordx4 v[10:13], v8, s[56:59], s62 offen')
            p('buffer_store_dwordx4 v[14:17], v8, s[56:59], s62 offen offset:16')
        p('s_waitcnt vmcnt(0)')
    p('L_end:')
    p('s_endpgm')

    body = [i for i in p.ins]
    b0 = next(k for k, i in enumerate(body) if i.text.strip() == ';LOOP_BEGIN')
    b1 = next(k for k, i in enumerate(body) if i.text.strip() == ';LOOP_END')
    for r in VA:
        ev = ['w' if (('v', r) in i.writes) else 'r' for i in body[b0:b1] if ('v', r) in i.writes or (i.kind == 'dsread' and ('v', r) in i.reads)]
        assert ev == ['r'] * 4 + ['w'], (r, ev)
    for k, r in enumerate(KA):
        ev = [('w' if (('v', r) in i.writes) else i.mods) for i in body[b0:b1] if ('v', r) in i.writes or (i.kind == 'dsread' and ('v', r) in i.reads)]
        wi = ev.index('w')
        assert all(x in ('offset:2048', 'offset:3072') for x in ev[:wi]) and ev[wi+1:wi+3] == ['offset:0', 'offset:1024'], (r, ev)

    p.insert_lgkm_waits()
    nn = p.insert_nops()
    p.check_all_edges()
    sys.stderr.write(f'nop-states={nn} stats={dict(p.stats())}\n')

    head = open('cdna_kernels/' + NAME + '.s.ref').read().split('; Override launch')[0]
    out = head
    out += f'; @launch grid=({NWG},1,1) block=(256,1,1) lds=163840\n'
    out += f'''.amdgcn_target "amdgcn-amd-amdhsa--gfx950"
.text
.globl {NAME}_kernel
.p2align 8
.type {NAME}_kernel,@function
{NAME}_kernel:
'''
    out += p.render()
    out += f'''.section .rodata,"a"
.p2align 6
.amdhsa_kernel {NAME}_kernel
  .amdhsa_next_free_vgpr 512
  .amdhsa_next_free_sgpr 96
  .amdhsa_accum_offset 256
  .amdhsa_group_segment_fixed_size 0
  .amdhsa_kernarg_size 48
  .amdhsa_user_sgpr_count 2
  .amdhsa_user_sgpr_kernarg_segment_ptr 1
  .amdhsa_system_sgpr_workgroup_id_x 1
.end_amdhsa_kernel
'''
    return out

if __name__ == '__main__':
    opts = {}
    outp = 'cdna_kernels/' + NAME + '.s'
    for x in sys.argv[1:]:
        k, val = x.split('=', 1)
        if k == 'out':
            outp = val
        elif k in ('ldpol', 'stpol'):
            opts[k] = (' ' + val.replace('+', ' ')) if val else ''
        elif k == 'thr':
            opts[k] = float(val)
        else:
            opts[k] = int(val)
    open(outp, 'w').write(gen(opts))
```

```python
import sys, struct, math
sys.path.insert(0, 'work')
from asmgen import *

NAME = 'standalone__gqa_softmax__near_ridge'

def f32bits(x):
    return struct.unpack('<I', struct.pack('<f', x))[0]

def gen(opts):
    NWG = 256
    NH = 4
    LD_POL = opts.get('ldpol', ' nt')
    ST_POL = opts.get('stpol', '')
    NB = 8
    PD = opts.get('pd', 6)
    STAMP = opts.get('stamp', 0)
    PROF = opts.get('prof', 0)
    DBG = opts.get('dbg', 0)
    NODMA = opts.get('nodma', 0)
    NOST = opts.get('nost', 0)
    THR = opts.get('thr', 8)
    EARLY = opts.get('early', 4)
    BTAIL = opts.get('btail', 3)
    WEVERY = opts.get('wevery', 2)
    DMAPOS = opts.get('dmapos', 0)
    TILE = 16384
    NSLOT = 7
    RING = NSLOT * TILE
    QAREA = RING
    C = 128 ** -0.5 * math.log2(math.e)

    O0 = 0
    def O(T, e): return O0 + (T * 8 + e) * 4
    SB = [96, 120]
    def S(z, T, k=0): return SB[z] + T * 8 + k
    P0 = 144
    def P(T): return P0 + 4 * T
    CI0 = 156
    def CI(T): return CI0 + 4 * T
    FB0 = 168
    def FB(f): return FB0 + (f % NB) * 4
    LQ = [200, 204, 208]; ONES = 212
    D = [216, 217, 218]; TM = [220, 222, 224]; MX = [226, 227]
    KA = [228 + i for i in range(4)]; VA = [232 + i for i in range(8)]
    KB, VB, VOFFK, VOFFV, VOFFO, QD0, QB, OWB = 240, 241, 242, 243, 244, 245, 246, 247
    AQ = 0; AH = 48
    def Q(T, s_): return AQ + (T * 4 + s_) * 4

    SRD_Q, SRD_K, SRD_V, SRD_O = 8, 12, 16, 20
    (sW4K, sRK, sRV, sFV, sFK, sFKP, sKV, sQ, sJ, sH, sC, sT0, sTHR, sT1, sNIC, sSPEC, sQM) = \
        (28, 29, 30, 31, 32, 33, 34, 35, 44, 45, 46, 47, 24, 25, 26, 27, 4)

    p = Prog()

    def dma_list(srd, voff):
        return [f'buffer_load_dwordx4 {v(voff)}, {s(srd,4)}, {s(sKV)} offen offset:{n*1024}{LD_POL} lds' for n in range(4)]

    def qdma(tmp):
        setup = [f'v_xor_b32 {v(tmp+k)}, {k*64}, {v(QD0)}' for k in range(1, 4)]
        reg = [QD0, tmp + 1, tmp + 2, tmp + 3]
        o = []
        for gi in range(3):
            for k in range(4):
                g = []
                if k == 0:
                    g.append(f's_add_u32 m0, {s(sQM)}, {gi*4096}')
                    g.append('s_nop 0')
                g.append(f'buffer_load_dwordx4 {v(reg[k])}, {s(SRD_Q,4)}, {s(sQ)} offen offset:{k*1024}{LD_POL} lds')
                if k == 3:
                    g.append(f's_add_u32 {s(sQ)}, {s(sQ)}, {4096 if gi < 2 else 49152 - 8192}')
                o.append(g)
        return setup, o

    def frag_reads(f):
        f %= 32
        blk, i = divmod(f, 8)
        if blk in (0, 2):
            n = (2 if blk == 0 else 0) + i // 4
            s_ = i % 4
            return [f'ds_read_b128 {v(FB(f),4)}, {v(KA[s_])} offset:{n*1024}']
        hh = 0 if blk == 1 else 1
        return [f'ds_read_b64_tr_b16 {v(FB(f),2)}, {v(VA[i])} offset:{(2*hh)*1024}',
                f'ds_read_b64_tr_b16 {v(FB(f)+2,2)}, {v(VA[i])} offset:{(2*hh+1)*1024}']

    def pins(blk):
        pinned = {}
        for i in range(8):
            f = blk * 8 + i
            r = frag_reads(f + PD)
            pinned[3 * i] = [r[0]]
            if len(r) > 1:
                pinned[3 * i + 1] = [r[1]]
            if (f + 1) % WEVERY == 0:
                pinned[3 * i + 2] = [f';WAITFOR {v(FB(f+WEVERY),4)}']
        return pinned

    ones_mfma = [f'v_mfma_f32_16x16x32_bf16 {v(LQ[T],4)}, {v(ONES,4)}, {v(P(T),4)}, {v(LQ[T],4)}' for T in range(3)]

    def blockA(blk, zc, free):
        zn = 1 - zc
        mf = []
        for i in range(8):
            f = blk * 8 + i
            n2, s_ = divmod(i, 4)
            for T in range(3):
                d = S(zn, T, 4 * n2)
                cc = v(CI(T), 4) if s_ == 0 else v(d, 4)
                mf.append(f'v_mfma_f32_16x16x32_bf16 {v(d,4)}, {v(FB(f),4)}, {a(Q(T,s_),4)}, {cc}')
        fill = []
        pend = None
        for q in range(4):
            for T in range(3):
                fill.append(f'v_exp_f32 {v(S(zc,T,2*q))}, {v(S(zc,T,2*q))}')
                fill.append(f'v_exp_f32 {v(S(zc,T,2*q+1))}, {v(S(zc,T,2*q+1))}')
                if pend:
                    fill.append(pend)
                pend = f'v_cvt_pk_bf16_f32 {v(P(T)+q)}, {v(S(zc,T,2*q))}, {v(S(zc,T,2*q+1))}'
        fill.append(pend)
        return weave3(mf, pins(blk), fill, free)

    def blockB(blk, zc, pre, post, free):
        zn = 1 - zc
        mf = []
        for e in range(8):
            f = blk * 8 + e
            for T in range(3):
                mf.append(f'v_mfma_f32_16x16x32_bf16 {v(O(T,e),4)}, {v(FB(f),4)}, {v(P(T),4)}, {v(O(T,e),4)}')
        mf += ones_mfma
        ch = [[S(zn, T, k) for T in range(3) for k in range(4)], [S(zn, T, 4 + k) for T in range(3) for k in range(4)]]
        mul = [[f'v_mul_f32 {v(x)}, {s(sC)}, {v(x)}' for x in ch[c]] for c in range(2)]
        seq = [[], []]
        for c in range(2):
            x = ch[c]
            seq[c].append(f'v_max3_f32 {v(MX[c])}, {v(x[0])}, {v(x[1])}, {v(x[2])}')
            for k in range(3, 11, 2):
                seq[c].append(f'v_max3_f32 {v(MX[c])}, {v(MX[c])}, {v(x[k])}, {v(x[k+1])}')
        fill = pre + mul[0]
        for k in range(12):
            fill.append(mul[1][k])
            if k % 2 == 1 and k // 2 < 5:
                fill.append(seq[0][k // 2])
        rest = seq[1] + [f'v_max3_f32 {v(MX[0])}, {v(MX[0])}, {v(ch[0][11])}, {v(ch[1][11])}',
                         f'v_max_f32 {v(MX[0])}, {v(MX[0])}, {v(MX[1])}',
                         f'v_cmp_lt_f32 vcc, {s(sTHR)}, {v(MX[0])}']
        post = list(post)
        for x in rest:
            fill.append(x)
            if post:
                fill.append(post.pop(0))
        fill += post
        return weave3(mf, pins(blk), fill, free, nfill=len(mf) - BTAIL)

    def ka_update():
        return [f'v_add_u32 {v(KA[0])}, {s(sRK)}, {v(KB)}'] + [f'v_xor_b32 {v(KA[i])}, {i*64}, {v(KA[0])}' for i in range(1, 4)]
    def va_update():
        return [f'v_add_u32 {v(VA[0])}, {s(sRV)}, {v(VB)}'] + [f'v_xor_b32 {v(VA[i])}, {i*32}, {v(VA[0])}' for i in range(1, 8)]
    def wrapinc(dst, src):
        return [f's_add_u32 {s(dst)}, {s(src)}, {TILE}', f's_sub_u32 {s(sT1)}, {s(src)}, {RING-TILE}', f's_min_u32 {s(dst)}, {s(dst)}, {s(sT1)}']

    p(f's_cmp_ge_u32 s2, {NWG}')
    p('s_cbranch_scc1 L_end')
    p('s_load_dwordx8 s[36:43], s[0:1], 0')
    if STAMP:
        p('s_memrealtime s[48:49]')
        p('s_memtime s[50:51]')
        p(f's_load_dwordx2 s[60:61], s[0:1], {32 if DBG else 40}')
    a_, b, c_, d, e_, w = 1, 2, 3, 4, 5, 6
    p(f'v_lshrrev_b32 {v(w)}, 6, v0', 'wave id')
    p(f'v_and_b32 v0, 63, v0', 'lane')
    p(f'v_readfirstlane_b32 {s(sT0)}, {v(w)}')
    p(f'v_lshrrev_b32 {v(a_)}, 4, v0', 't = g = lane>>4')
    p(f'v_and_b32 {v(b)}, 15, v0', 'pos = rho = lane&15')
    p(f'v_lshl_add_u32 {v(c_)}, {v(w)}, 4, {v(a_)}', '16w+t')
    p(f'v_lshl_add_u32 {v(d)}, {v(w)}, 2, {v(a_)}', '4w+t')
    p(f'v_xor_b32 {v(d)}, {v(d)}, {v(b)}')
    p(f'v_lshlrev_b32 {v(d)}, 4, {v(d)}')
    p(f'v_lshl_add_u32 {v(VOFFK)}, {v(c_)}, 8, {v(d)}')
    p(f'v_and_b32 {v(d)}, 1, {v(w)}')
    p(f'v_lshlrev_b32 {v(d)}, 2, {v(d)}')
    p(f'v_add_u32 {v(d)}, {v(d)}, {v(a_)}')
    p(f'v_lshlrev_b32 {v(d)}, 1, {v(d)}', '8(w&1)+2t')
    p(f'v_xor_b32 {v(d)}, {v(d)}, {v(b)}')
    p(f'v_lshlrev_b32 {v(d)}, 4, {v(d)}')
    p(f'v_lshl_add_u32 {v(VOFFV)}, {v(c_)}, 8, {v(d)}')
    p(f'v_mul_u32_u24 {v(e_)}, 12288, {v(w)}')
    p(f'v_xor_b32 {v(d)}, {v(a_)}, {v(b)}', 'g^rho')
    p(f'v_lshlrev_b32 {v(d)}, 4, {v(d)}')
    p(f'v_lshl_add_u32 {v(c_)}, {v(a_)}, 8, {v(d)}')
    p(f'v_add_u32 {v(QD0)}, {v(c_)}, {v(e_)}')
    qsetup, qgroups = qdma(SB[1])
    for x in qsetup: p(x)
    p(f's_lshl_b32 {s(sW4K)}, {s(sT0)}, 12')
    p(f's_mul_i32 {s(sQM)}, {s(sT0)}, 12288')
    p(f's_add_u32 {s(sQM)}, {s(sQM)}, {QAREA}')
    p(f's_mul_i32 s5, s2, {NH*49152}')
    p(f's_mul_i32 s6, s2, {NH*131072}')
    for srd, nbytes in ((SRD_Q, NH * 49152), (SRD_K, NH * 131072), (SRD_V, NH * 131072), (SRD_O, NH * 49152)):
        z = (NODMA and srd in (SRD_K, SRD_V, SRD_Q)) or (NOST and srd == SRD_O)
        p(f's_mov_b32 {s(srd+2)}, {0 if z else nbytes}')
        p(f's_mov_b32 {s(srd+3)}, 0x20000')
    p(f's_mov_b32 {s(sKV)}, 0')
    p(f's_mov_b32 {s(sQ)}, 0')
    p(f's_mov_b32 m0, {s(sW4K)}')
    p('s_waitcnt lgkmcnt(0)')
    for srd, src, off in ((SRD_K, 38, 6), (SRD_Q, 36, 5), (SRD_V, 40, 6), (SRD_O, 42, 5)):
        p(f's_add_u32 {s(srd)}, {s(src)}, s{off}')
        p(f's_addc_u32 {s(srd+1)}, {s(src+1)}, 0')
        p(f's_and_b32 {s(srd+1)}, {s(srd+1)}, 0xffff')
        if srd == SRD_K:
            for x in dma_list(SRD_K, VOFFK): p(x)
        if srd == SRD_Q:
            for g in qgroups:
                for x in g: p(x)
    p(f's_add_u32 {s(SRD_K)}, {s(SRD_K)}, {TILE}')
    p(f's_addc_u32 {s(SRD_K+1)}, {s(SRD_K+1)}, 0')
    if not NODMA:
        p(f's_mov_b32 {s(SRD_K+2)}, {NH*131072 - TILE}')
    p(f's_add_u32 m0, {s(sW4K)}, {TILE}')
    for x in dma_list(SRD_V, VOFFV): p(x)
    p(f's_add_u32 m0, {s(sW4K)}, {2*TILE}')
    for x in dma_list(SRD_K, VOFFK): p(x)
    p(f's_mov_b32 {s(sKV)}, {TILE}')
    p(f'v_add_u32 {v(e_)}, {QAREA}, {v(e_)}')
    p(f'v_lshl_add_u32 {v(e_)}, {v(b)}, 8, {v(e_)}', 'QAREA + w*12288 + rho*256')
    p(f'v_add_u32 {v(QB)}, {v(e_)}, {v(d)}')
    p(f'v_lshrrev_b32 {v(c_)}, 1, {v(a_)}')
    p(f'v_xor_b32 {v(c_)}, {v(c_)}, {v(b)}')
    p(f'v_lshl_add_u32 {v(e_)}, {v(c_)}, 4, {v(e_)}')
    p(f'v_and_b32 {v(c_)}, 1, {v(a_)}')
    p(f'v_lshl_add_u32 {v(OWB)}, {v(c_)}, 3, {v(e_)}')
    p(f'v_mul_u32_u24 {v(e_)}, 12288, {v(w)}')
    p(f'v_lshl_add_u32 {v(VOFFO)}, v0, 4, {v(e_)}')
    p(f'v_lshrrev_b32 {v(c_)}, 2, {v(b)}', 'rho>>2')
    p(f'v_and_b32 {v(w)}, 3, {v(b)}', 'rho&3 (= c too)')
    p(f'v_lshl_add_u32 {v(e_)}, {v(w)}, 8, {v(d)}')
    p(f'v_lshl_add_u32 {v(KB)}, {v(c_)}, 12, {v(e_)}')
    p(f'v_and_b32 {v(e_)}, 1, {v(a_)}')
    p(f'v_lshl_add_u32 {v(e_)}, {v(e_)}, 2, {v(c_)}', '4(g&1)+r')
    p(f'v_lshlrev_b32 {v(e_)}, 5, {v(e_)}')
    p(f'v_lshl_add_u32 {v(e_)}, {v(w)}, 3, {v(e_)}')
    p(f'v_lshl_add_u32 {v(e_)}, {v(c_)}, 8, {v(e_)}')
    p(f'v_lshl_add_u32 {v(VB)}, {v(a_)}, 12, {v(e_)}')
    p(f's_mov_b32 {s(sC)}, 0x{f32bits(C):08x}')
    p(f's_mov_b32 {s(sNIC)}, 0x{f32bits(-1.0 / C):08x}')
    p(f's_mov_b32 {s(sTHR)}, 0x{f32bits(THR):08x}')
    p(f's_mov_b32 {s(sRK)}, 0')
    p(f's_mov_b32 {s(sRV)}, {TILE}')
    p(f's_mov_b32 {s(sFV)}, {3*TILE}')
    p(f's_mov_b32 {s(sFK)}, {4*TILE}')
    p(f's_mov_b32 {s(sFKP)}, {2*TILE}')
    p(f's_mov_b32 {s(sJ)}, 7')
    p(f's_mov_b32 {s(sH)}, -1')
    p(f's_mov_b32 {s(sSPEC)}, 0')
    for x in ka_update() + va_update(): p(x)
    for i in range(4):
        p(f'v_mov_b32 {v(ONES+i)}, 0x3f803f80')
    p('s_waitcnt vmcnt(8)')
    for i in range(12):
        p(f'v_mov_b64 {v(SB[1]+2*i,2)}, 0')
    p('s_barrier')
    p(f's_add_u32 m0, {s(sW4K)}, {3*TILE}')
    for f in range(16, 16 + PD):
        for x in frag_reads(f): p(x)
    for x in dma_list(SRD_V, VOFFV): p(x)
    p(f's_add_u32 m0, {s(sW4K)}, {4*TILE}')
    for x in dma_list(SRD_K, VOFFK)[:{0: 0, 1: 2, 2: 4, 3: 0}[DMAPOS]]: p(x)
    p('s_waitcnt lgkmcnt(0)')
    if PROF:
        p('s_memtime s[64:65]')
        p('s_waitcnt lgkmcnt(0)')
        for k in range(1, 4):
            p(f's_mov_b32 s{64+2*k}, s64')
        for k in range(8):
            p(f's_mov_b32 s{80+k}, 0')
        p('s_sub_u32 s86, s64, s50', 'startup cycles')
    if DBG == 2:
        p('s_memrealtime s[64:65]')
        p('s_waitcnt lgkmcnt(0)')
    p('s_branch L_qread')

    def prof_acc():
        if PROF:
            p('s_memtime s[76:77]')
            p('s_waitcnt lgkmcnt(0)')
            for k in range(6):
                p(f's_sub_u32 s90, s{66+2*k}, s{64+2*k}')
                p(f's_add_u32 s{80+k}, s{80+k}, s90')
            p('s_mov_b32 s64, s76')

    dv = dma_list(SRD_V, VOFFV)
    dk = dma_list(SRD_K, VOFFK)
    if DMAPOS == 0:
        fa0 = [(2, dv[0]), (13, dv[1])]
        fb0 = [(3, dv[2]), (13, dv[3]), f's_add_u32 m0, {s(sFK)}, {s(sW4K)}']
        fa1 = [(2, dk[0]), (13, dk[1])]
        fb1 = [(3, dk[2]), (13, dk[3])]
    else:
        fa0 = [(2, dv[0]), (9, dv[1]), (17, dv[2])]
        fb0 = [(3, dv[3]), f's_add_u32 m0, {s(sFK)}, {s(sW4K)}', (11, dk[0]), (19, dk[1])]
        fa1 = [(2, dk[2]), (13, dk[3])]
        fb1 = []
    burst0 = []; burst1 = []
    if DMAPOS == 2:
        fa0 = []; fb0 = []; fa1 = ['s_nop 0', 's_nop 0']; fb1 = []
        burst0 = dv + [f's_add_u32 m0, {s(sFK)}, {s(sW4K)}'] + dk
    if DMAPOS == 3:
        fa0 = []; fb0 = [f's_add_u32 m0, {s(sFK)}, {s(sW4K)}']; fa1 = ['s_nop 0', 's_nop 0']; fb1 = []
        burst0 = dv; burst1 = dk
    p(';LOOP_BEGIN')
    p('.p2align 6')
    p('L_loop:')
    prof_acc()
    p('s_waitcnt vmcnt(8)')
    p('L_sync:')
    p('s_barrier')
    if PROF: p('s_memtime s[66:67]')
    for x in burst0: p(x)
    for x in blockA(0, 0, fa0): p(x)
    if PROF: p('s_memtime s[68:69]')
    for x in blockB(1, 0, ka_update(), [], fb0 + [f's_cmp_eq_u32 {s(sJ)}, 7']): p(x)
    if PROF: p('s_memtime s[70:71]')
    p('s_cbranch_vccnz L_rareY')
    p('L_retY:')
    p('s_cbranch_scc1 L_qread')
    p('L_qdone:')
    for x in burst1: p(x)
    for x in blockA(2, 1, [f's_add_u32 {s(sJ)}, {s(sJ)}, 1', fa1[0], f's_lshr_b32 {s(sSPEC)}, {s(sSPEC)}, 1',
                           f's_mov_b32 {s(sRK)}, {s(sFKP)}', fa1[1], f's_mov_b32 {s(sFKP)}, {s(sFK)}']): p(x)
    if PROF: p('s_memtime s[72:73]')
    va = va_update()
    ptr = [(2, f's_mov_b32 {s(sRV)}, {s(sFV)}')] + wrapinc(sFV, sFK)
    ptr2 = wrapinc(sFK, sFV) + [f's_add_u32 {s(sKV)}, {s(sKV)}, {TILE}', f's_add_u32 m0, {s(sFV)}, {s(sW4K)}', f's_cmp_eq_u32 {s(sJ)}, 8']
    if DMAPOS == 0:
        fr = ptr[:1] + fb1[:1] + ptr[1:] + fb1[1:] + ptr2
    else:
        fr = ptr + ptr2
    for x in blockB(3, 1, va[:6], va[6:], fr): p(x)
    if PROF: p('s_memtime s[74:75]')
    p('s_cbranch_scc1 L_boundary')
    p('s_cbranch_vccnz L_rareX')
    p('L_retX:')
    p(f's_bitcmp0_b32 {s(sSPEC)}, 0')
    p('s_cbranch_scc1 L_loop')
    p(';LOOP_END')

    def store_run(q0, q1):
        last = None
        for q in range(q0, q1):
            h, i = divmod(q, 12)
            if (h, i // 4) != last:
                p(f's_mov_b32 {s(sT0)}, {h*49152 + (i//4)*4096}')
                last = (h, i // 4)
            src = a(AH + q * 4, 4) if h < NH - 1 else v(O0 + i * 4, 4)
            p(f'buffer_store_dwordx4 {src}, {v(VOFFO)}, {s(SRD_O,4)}, {s(sT0)} offen offset:{(i%4)*1024}{ST_POL}')

    prof_acc()
    if PROF:
        p(f's_cmp_eq_u32 {s(sH)}, 0')
        p('s_cselect_b32 s91, s81, s91', 'A0 time of the first iteration')
    NE = 8 - EARLY
    if NE > 0:
        p(f's_cmp_gt_u32 {s(sJ)}, 1')
        p('s_cbranch_scc1 L_early0')
    p('s_waitcnt vmcnt(20)')
    p('s_branch L_sync')
    bounds = [round(36 * k / NE) for k in range(NE + 1)] if NE else []
    for k in range(NE):
        p(f'L_early{k}:')
        if k < NE - 1:
            p(f's_cmp_lg_u32 {s(sJ)}, {EARLY+k}')
            p(f's_cbranch_scc1 L_early{k+1}')
        if DBG == 2 and k == 0:
            p('s_memrealtime s[72:73]')
            p('s_waitcnt lgkmcnt(0)')
        p(f's_waitcnt vmcnt({8 + (bounds[k] - bounds[k-1] if k else 0)})')
        store_run(bounds[k], bounds[k + 1])
        p('s_branch L_sync')

    p('L_qread:')
    t0 = SB[0]
    for k in range(1, 4):
        p(f'v_xor_b32 {v(t0+k)}, {k*64}, {v(QB)}')
    p('s_waitcnt lgkmcnt(2)')
    for T in range(3):
        for s_ in range(4):
            p(f'ds_read_b128 {a(Q(T,s_),4)}, {v(QB if s_ == 0 else t0+s_)} offset:{T*4096}')
    for i in range(6):
        p(f'v_mov_b64 {v(CI0+2*i,2)}, 0')
    p('s_waitcnt lgkmcnt(0)')
    p('s_branch L_qdone')

    def unit_max(z):
        o = []
        for T in range(3):
            o.append(f'v_max3_f32 {v(D[T])}, {v(S(z,T,0))}, {v(S(z,T,1))}, {v(S(z,T,2))}')
        for k in (3, 5):
            for T in range(3):
                o.append(f'v_max3_f32 {v(D[T])}, {v(D[T])}, {v(S(z,T,k))}, {v(S(z,T,k+1))}')
        for T in range(3):
            o.append(f'v_max_f32 {v(D[T])}, {v(D[T])}, {v(S(z,T,7))}')
        for op in ('v_permlane16_swap_b32', 'v_permlane32_swap_b32'):
            for T in range(3):
                o.append(f'v_mov_b32 {v(TM[T])}, {v(D[T])}')
            for T in range(3):
                o.append(f'{op} {v(D[T])}, {v(TM[T])}')
            for T in range(3):
                o.append(f'v_max_f32 {v(D[T])}, {v(D[T])}, {v(TM[T])}')
        return o
    def unit_shift(z):
        o = []
        for T in range(3):
            for k in range(8):
                o.append(f'v_sub_f32 {v(S(z,T,k))}, {v(S(z,T,k))}, {v(D[T])}')
            for k in range(4):
                o.append(f'v_fmac_f32 {v(CI(T)+k)}, {s(sNIC)}, {v(D[T])}')
        return o

    p('L_boundary:')
    p(f's_cmp_lt_i32 {s(sH)}, 0')
    p('s_cbranch_scc1 L_newhead')
    W = [OWB] + [SB[1] + e for e in range(1, 8)]
    R = [SB[1] + 8 + k for k in range(4)]
    for e in range(1, 8):
        p(f'v_xor_b32 {v(W[e])}, {e*32}, {v(OWB)}')
    p(f'v_add_u32 {v(R[0])}, {QAREA}, {v(QD0)}')
    for k in range(1, 4):
        p(f'v_xor_b32 {v(R[k])}, {k*64}, {v(R[0])}')
    for T in range(3):
        p(f'v_rcp_f32 {v(TM[T])}, {v(LQ[T])}')
    p('s_waitcnt lgkmcnt(0)')
    for T in range(3):
        for e in range(8):
            r = O(T, e)
            for i in range(2):
                p(f'v_pk_mul_f32 {v(r+2*i,2)}, {v(r+2*i,2)}, {v(TM[T],2)} op_sel_hi:[1,0]')
        if T > 0:
            p('s_waitcnt lgkmcnt(4)')
        for e in range(8):
            r = O(T, e)
            p(f'v_cvt_pk_bf16_f32 {v(r)}, {v(r)}, {v(r+1)}')
            p(f'v_cvt_pk_bf16_f32 {v(r+1)}, {v(r+2)}, {v(r+3)}')
            if e > 0:
                p(f'ds_write_b64 {v(W[e-1])}, {v(O(T,e-1),2)} offset:{T*4096}')
        p(f'ds_write_b64 {v(W[7])}, {v(O(T,7),2)} offset:{T*4096}')
    p(f's_cmp_eq_u32 {s(sH)}, {NH-1}')
    p('s_waitcnt lgkmcnt(0)')
    p('s_cbranch_scc1 L_final')
    for h in range(NH - 1):
        if h < NH - 2:
            p(f's_cmp_lg_u32 {s(sH)}, {h}')
            p(f's_cbranch_scc1 L_hold{h+1}')
        for i in range(12):
            p(f'ds_read_b128 {a(AH + h*48 + i*4, 4)}, {v(R[i%4])} offset:{i*1024}')
        p(';NOWAIT')
        if h < NH - 2:
            p('s_branch L_newhead')
            p(f'L_hold{h+1}:')
    p('L_newhead:')
    qsetup, qgroups = qdma(SB[1] + 12)
    zs = [f'v_mov_b64 {v(O0+2*i,2)}, 0' for i in range(48)] + [f'v_mov_b64 {v(LQ[0]+2*i,2)}, 0' for i in range(6)]
    um = unit_max(0)
    work = qsetup + um + zs + unit_shift(0)
    first_dma = len(qsetup) + len(um)
    step = (len(work) - first_dma) // 12
    for i, x in enumerate(work):
        if i == first_dma:
            p('s_waitcnt lgkmcnt(0)')
        if i >= first_dma and (i - first_dma) % step == 0 and qgroups:
            for y in qgroups.pop(0): p(y)
        p(x)
    assert not qgroups
    p(f's_add_u32 m0, {s(sFV)}, {s(sW4K)}')
    p(f's_add_u32 {s(sH)}, {s(sH)}, 1')
    p(f's_mov_b32 {s(sJ)}, 0')
    p(f's_cmp_eq_u32 {s(sH)}, {NH-1}')
    p(f's_cselect_b32 {s(sSPEC)}, {(0xff << EARLY) & 0xff | 2}, 2')
    if DBG == 2:
        p('s_mov_b32 s66, s68')
        p('s_mov_b32 s68, s70')
        p('s_memrealtime s[70:71]')
        p('s_waitcnt lgkmcnt(0)')
    prof_acc()
    p('s_waitcnt vmcnt(20)')
    p('s_branch L_sync')

    def rare(z, lab, ret):
        p(f'{lab}:')
        for x in unit_max(z): p(x)
        for T in range(3):
            p(f'v_max_f32 {v(D[T])}, 0, {v(D[T])}')
        for T in range(3):
            p(f'v_exp_f32 {v(TM[T])}, -{v(D[T])}')
        for x in unit_shift(z): p(x)
        for T in range(3):
            for i in range(32):
                p(f'v_mul_f32 {v(O(T,0)+i)}, {v(O(T,0)+i)}, {v(TM[T])}')
        for T in range(3):
            p(f'v_mul_f32 {v(LQ[T])}, {v(LQ[T])}, {v(TM[T])}')
        p(f's_branch {ret}')
    rare(0, 'L_rareX', 'L_retX')
    rare(1, 'L_rareY', 'L_retY')

    p('L_final:')
    if DBG == 2:
        p('s_memrealtime s[74:75]')
        p('s_waitcnt lgkmcnt(0)')
        if NE == 0: p('s_mov_b32 s72, s74')
    if PROF:
        p('s_memtime s[92:93]')
    for i in range(12):
        p(f'ds_read_b128 {v(O0 + i*4, 4)}, {v(R[i%4])} offset:{i*1024}')
    if NE == 0:
        store_run(0, 36)
    store_run(36, 48)
    p('s_waitcnt vmcnt(0)')
    ENC = opts.get('enc', 0)
    if ENC:
        p('s_memrealtime s[52:53]')
        p('s_memtime s[54:55]')
        p('s_waitcnt lgkmcnt(0)')
        p(f's_lshr_b32 s63, {s(sW4K)}, 12')
        p(f's_cmp_lg_u32 s63, 0')
        p('s_cbranch_scc1 L_end')
        p(f's_cmp_lg_u32 s2, {opts.get("encwg", 0)}')
        p('s_cbranch_scc1 L_end')
        if ENC == 1:
            p('s_sub_u32 s62, s52, s48'); p('s_mul_i32 s62, s62, 10')
        elif ENC == 2:
            p('s_sub_u32 s62, s54, s50'); p('s_lshr_b32 s62, s62, 1')
        elif ENC == 3:
            p('s_sub_u32 s62, s74, s48'); p('s_mul_i32 s62, s62, 10')
        elif ENC == 4:
            p('s_sub_u32 s62, s64, s48'); p('s_mul_i32 s62, s62, 10')
        p('s_add_u32 s62, s62, 30000')
        p('L_spin:')
        p('s_sleep 8')
        p('s_memrealtime s[52:53]')
        p('s_waitcnt lgkmcnt(0)')
        p('s_sub_u32 s63, s52, s48')
        p('s_cmp_lt_u32 s63, s62')
        p('s_cbranch_scc1 L_spin')
    elif STAMP and DBG == 2:
        p('s_memrealtime s[52:53]')
        p('s_mov_b32 s56, s60\ns_and_b32 s57, s61, 0xffff\ns_mov_b32 s58, 256\ns_mov_b32 s59, 0x20000')
        p('s_waitcnt lgkmcnt(0)')
        p('v_mov_b32 v8, 0\ns_mov_b64 exec, 1')
        for k, r in enumerate((48, 64, 66, 68, 70, 72, 74, 52)):
            p(f'v_mov_b32 v0, s{r}')
            p(f'v_not_b32 v1, s{r}')
            p(f'buffer_atomic_umax v1, v8, s[56:59], 0 offen offset:{8*k}')
            p(f'buffer_atomic_umax v0, v8, s[56:59], 0 offen offset:{8*k+4}')
            p('s_nop 1')
        p('s_waitcnt vmcnt(0)')
    elif STAMP and DBG:
        p('s_memrealtime s[52:53]')
        p('s_memtime s[54:55]')
        p('s_mov_b32 s56, s60\ns_and_b32 s57, s61, 0xffff\ns_mov_b32 s58, 256\ns_mov_b32 s59, 0x20000')
        p('s_waitcnt lgkmcnt(0)')
        p('s_not_b32 s62, s48')
        p('v_mov_b32 v0, s52\nv_mov_b32 v1, s62\nv_mov_b32 v8, 0\ns_mov_b64 exec, 1')
        p('buffer_atomic_umax v0, v8, s[56:59], 0 offen')
        p('buffer_atomic_umax v1, v8, s[56:59], 0 offen offset:4')
        p(f's_lshr_b32 s63, {s(sW4K)}, 12')
        p('s_add_u32 s63, s63, s2')
        p('s_cmp_lg_u32 s63, 0')
        p('s_cbranch_scc1 L_dbgdone')
        p('s_sub_u32 s88, s52, s48')
        p('s_sub_u32 s89, s54, s50')
        p('s_sub_u32 s87, s54, s92')
        for i in range(12):
            p(f'v_mov_b32 v{10+i}, s{80+i}')
        p('buffer_store_dwordx4 v[10:13], v8, s[56:59], 0 offen offset:8')
        p('buffer_store_dwordx4 v[14:17], v8, s[56:59], 0 offen offset:24')
        p('buffer_store_dwordx4 v[18:21], v8, s[56:59], 0 offen offset:40')
        p('L_dbgdone:')
        p('s_waitcnt vmcnt(0)')
    elif STAMP:
        p('s_memrealtime s[52:53]')
        p('s_memtime s[54:55]')
        p('s_mov_b32 s56, s60\ns_and_b32 s57, s61, 0xffff\ns_mov_b32 s58, 0x100000\ns_mov_b32 s59, 0x20000')
        p(f's_lshl_b32 s62, s2, 7\ns_lshr_b32 s63, {s(sW4K)}, 7\ns_add_u32 s62, s62, s63')
        p('s_waitcnt lgkmcnt(0)')
        p('s_getreg_b32 s51, hwreg(HW_REG_XCC_ID)')
        p('s_getreg_b32 s55, hwreg(HW_REG_HW_ID)')
        for i in range(8):
            p(f'v_mov_b32 v{i}, s{48+i}')
        p('v_mov_b32 v8, 0\ns_mov_b64 exec, 1')
        p('buffer_store_dwordx4 v[0:3], v8, s[56:59], s62 offen')
        p('buffer_store_dwordx4 v[4:7], v8, s[56:59], s62 offen offset:16')
        if PROF:
            p('s_sub_u32 s87, s54, s92')
            p('s_add_u32 s62, s62, 0x10000')
            for i in range(8):
                p(f'v_mov_b32 v{10+i}, s{80+i}')
            p('buffer_store_dwordx4 v[10:13], v8, s[56:59], s62 offen')
            p('buffer_store_dwordx4 v[14:17], v8, s[56:59], s62 offen offset:16')
        p('s_waitcnt vmcnt(0)')
    p('L_end:')
    p('s_endpgm')

    body = [i for i in p.ins]
    b0 = next(k for k, i in enumerate(body) if i.text.strip() == ';LOOP_BEGIN')
    b1 = next(k for k, i in enumerate(body) if i.text.strip() == ';LOOP_END')
    for r in VA:
        ev = ['w' if (('v', r) in i.writes) else 'r' for i in body[b0:b1] if ('v', r) in i.writes or (i.kind == 'dsread' and ('v', r) in i.reads)]
        assert ev == ['r'] * 4 + ['w'], (r, ev)
    for k, r in enumerate(KA):
        ev = [('w' if (('v', r) in i.writes) else i.mods) for i in body[b0:b1] if ('v', r) in i.writes or (i.kind == 'dsread' and ('v', r) in i.reads)]
        wi = ev.index('w')
        assert all(x in ('offset:2048', 'offset:3072') for x in ev[:wi]) and ev[wi+1:wi+3] == ['offset:0', 'offset:1024'], (r, ev)

    p.insert_lgkm_waits()
    nn = p.insert_nops()
    p.check_all_edges()
    sys.stderr.write(f'nop-states={nn} stats={dict(p.stats())}\n')

    head = open('cdna_kernels/' + NAME + '.s.ref').read().split('; Override launch')[0]
    out = head
    out += f'; @launch grid=({NWG},1,1) block=(256,1,1) lds=163840\n'
    out += f'''.amdgcn_target "amdgcn-amd-amdhsa--gfx950"
.text
.globl {NAME}_kernel
.p2align 8
.type {NAME}_kernel,@function
{NAME}_kernel:
'''
    out += p.render()
    out += f'''.section .rodata,"a"
.p2align 6
.amdhsa_kernel {NAME}_kernel
  .amdhsa_next_free_vgpr 512
  .amdhsa_next_free_sgpr 96
  .amdhsa_accum_offset 256
  .amdhsa_group_segment_fixed_size 0
  .amdhsa_kernarg_size 48
  .amdhsa_user_sgpr_count 2
  .amdhsa_user_sgpr_kernarg_segment_ptr 1
  .amdhsa_system_sgpr_workgroup_id_x 1
.end_amdhsa_kernel
'''
    return out

if __name__ == '__main__':
    opts = {}
    outp = 'cdna_kernels/' + NAME + '.s'
    for x in sys.argv[1:]:
        k, val = x.split('=', 1)
        if k == 'out':
            outp = val
        elif k in ('ldpol', 'stpol'):
            opts[k] = (' ' + val.replace('+', ' ')) if val else ''
        elif k == 'thr':
            opts[k] = float(val)
        else:
            opts[k] = int(val)
    open(outp, 'w').write(gen(opts))
```

```python
import re, sys, glob, os
src = open('ubench_gen.py').read()
exec(src[:src.index('N = 64')])
for f in glob.glob('ub/*'): os.remove(f)
def body_of(path):
    txt = open(path).read()
    body = txt[txt.index('L_loop:\n') + 8: txt.index(';LOOP_END')]
    lines = [l.split(';')[0].strip() for l in body.split('\n') if l.strip()]
    return [l for l in lines if l]
def isctl(l): return l.startswith('s_cbranch') or l.startswith('s_branch') or l.endswith(':') or 'vmcnt' in l
init = '''    v_and_b32 v1, 15, v0
    v_lshrrev_b32 v2, 4, v0
    v_lshrrev_b32 v3, 2, v1
    v_and_b32 v4, 3, v1
    v_xor_b32 v5, v2, v1
    v_lshlrev_b32 v5, 4, v5
    v_lshl_add_u32 v5, v4, 8, v5
    v_lshl_add_u32 v240, v3, 12, v5
    v_and_b32 v5, 1, v2
    v_lshl_add_u32 v5, v5, 2, v3
    v_lshlrev_b32 v5, 5, v5
    v_lshl_add_u32 v5, v4, 3, v5
    v_lshl_add_u32 v5, v3, 8, v5
    v_lshl_add_u32 v244, v2, 12, v5
    v_add_u32 v244, 16384, v244
    s_mov_b32 s29, 0
    s_mov_b32 s30, 16384
    s_mov_b32 s7, 32768
    s_mov_b32 s34, 0
    s_mov_b32 s27, 147472
    s_mov_b32 s47, 0x42000000
    s_mov_b32 s44, 0x3e0293ee
    v_xor_b32 v241, 64, v240
    v_xor_b32 v242, 128, v240
    v_xor_b32 v243, 192, v240
''' + ''.join(f'    v_xor_b32 v{244+i}, {32*i}, v244\n' for i in range(1, 8)) + ''.join(f'    v_mov_b32 v{i}, 0\n' for i in list(range(200, 240)) + [252, 253, 254])
for path in sys.argv[1:]:
    nm = os.path.basename(path)[:-2]
    lines = [l for l in body_of(path) if not isctl(l) and not l.startswith('buffer_')]
    T = {nm + '_full': lines,
         nm + '_nobar': [l for l in lines if not l.startswith('s_barrier')],
         nm + '_nods': [l for l in lines if not l.startswith('ds_') and not l.startswith('s_waitcnt') and not l.startswith('s_barrier')],
         nm + '_vonly': [l for l in lines if l.startswith('v_')],
         }
    for k_, b in T.items():
        b = [l for l in b if l != 's_add_u32 s34, s34, 1']
        k = kern(b, ['s_sleep 8'], 512 if '2w' in sys.argv[0] or True else 256)
        k = k.replace('lds=65536', 'lds=163840')
        k = k.replace('    s_waitcnt lgkmcnt(0)\n    s_barrier\n', init + '    s_waitcnt lgkmcnt(0)\n    s_barrier\n', 1)
        open(f'ub_{k_}.s', 'w').write(k)
        print(k_, len(b))
```

```python
import glob, os, sys, re
NAME = 'standalone__gqa_softmax__near_ridge'
def body_of(path):
    txt = open(path).read()
    body = txt[txt.index('L_loop:\n') + 8: txt.index(';LOOP_END')]
    lines = [l.split(';')[0].strip() for l in body.split('\n')]
    lines = [l for l in lines if l and not (l.startswith('s_cbranch') or l.startswith('s_branch') or l.endswith(':'))]
    return [l for l in lines if l != 's_add_u32 s34, s34, 1']
def kern(block, iters=1500):
    o = f'; @launch grid=(256,1,1) block=(256,1,1) lds=163840\n.amdgcn_target "amdgcn-amd-amdhsa--gfx950"\n.text\n.globl {NAME}_kernel\n.p2align 8\n.type {NAME}_kernel,@function\n{NAME}_kernel:\n'
    L = []; A = L.append
    A('s_cmp_ge_u32 s2, 256'); A('s_cbranch_scc1 L_end')
    A('s_load_dwordx2 s[60:61], s[0:1], 40')
    A('v_lshrrev_b32 v1, 6, v0'); A('s_nop 1'); A('v_readfirstlane_b32 s20, v1')
    A('s_mov_b32 s64, 0x9e3779b1'); A('s_lshl_b32 s65, s2, 8'); A('v_add_u32 v10, s65, v0')
    def rnd(dst, salt):
        A(f'v_add_u32 v9, {salt}, v10'); A('v_mul_lo_u32 v9, v9, s64'); A('v_lshrrev_b32 v8, 15, v9'); A('v_xor_b32 v9, v9, v8'); A('v_mul_lo_u32 v9, v9, s64')
        A('v_and_b32 v9, 0x81ff81ff, v9'); A(f'v_or_b32 v{dst}, 0x3e003e00, v9')
    A('v_lshlrev_b32 v11, 2, v0'); A('s_mov_b32 s21, 0')
    A('L_fill:')
    A('v_add_u32 v10, 0x10001, v10'); rnd(12, 77); A('ds_write_b32 v11, v12'); A('v_add_u32 v11, 1024, v11')
    A('s_add_u32 s21, s21, 1'); A('s_cmp_lt_u32 s21, 144'); A('s_cbranch_scc1 L_fill')
    for i in range(96, 144): rnd(i, i * 7919)
    for i in list(range(0, 96)) + list(range(144, 240)) + [252, 253, 254]: A(f'v_mov_b32 v{i}, 0') if i not in (0,) else None
    for i in range(236, 240): A(f'v_mov_b32 v{i}, 0x3f803f80')
    A('v_and_b32 v0, 63, v0')
    for x in '''v_and_b32 v1, 15, v0
v_lshrrev_b32 v2, 4, v0
v_lshrrev_b32 v3, 2, v1
v_and_b32 v4, 3, v1
v_xor_b32 v5, v2, v1
v_lshlrev_b32 v5, 4, v5
v_lshl_add_u32 v5, v4, 8, v5
v_lshl_add_u32 v240, v3, 12, v5
v_and_b32 v5, 1, v2
v_lshl_add_u32 v5, v5, 2, v3
v_lshlrev_b32 v5, 5, v5
v_lshl_add_u32 v5, v4, 3, v5
v_lshl_add_u32 v5, v3, 8, v5
v_lshl_add_u32 v244, v2, 12, v5
v_add_u32 v244, 16384, v244
s_mov_b32 s29, 0
s_mov_b32 s30, 16384
s_mov_b32 s7, 32768
s_mov_b32 s34, 0
s_mov_b32 s27, 147472
s_mov_b32 s47, 0x42000000
s_mov_b32 s44, 0x3e0293ee
v_xor_b32 v241, 64, v240
v_xor_b32 v242, 128, v240
v_xor_b32 v243, 192, v240'''.split('\n'): A(x)
    for i in range(1, 8): A(f'v_xor_b32 v{244+i}, {32*i}, v244')
    for i in range(0, 6): A(f'v_mov_b32 v{i}, 0')
    A('s_waitcnt lgkmcnt(0)'); A('s_barrier'); A('s_mov_b32 s21, 0')
    A('s_memtime s[50:51]'); A('s_memrealtime s[52:53]'); A('s_waitcnt lgkmcnt(0)')
    o += ''.join((x if x.endswith(':') else '    ' + x) + '\n' for x in L) + '.p2align 6\nL_A:\n' + ''.join('    ' + x + '\n' for x in block)
    L = []; A = L.append
    A('s_add_u32 s21, s21, 1'); A(f's_cmp_lt_u32 s21, {iters}'); A('s_cbranch_scc1 L_A')
    A('s_waitcnt lgkmcnt(0)')
    A('s_memtime s[54:55]'); A('s_memrealtime s[66:67]')
    A('s_mov_b32 s56, s60'); A('s_and_b32 s57, s61, 0xffff'); A('s_mov_b32 s58, 0x100000'); A('s_mov_b32 s59, 0x20000')
    A('s_lshl_b32 s62, s2, 6'); A('s_lshl_b32 s63, s20, 3'); A('s_add_u32 s62, s62, s63'); A('s_waitcnt lgkmcnt(0)')
    A('s_sub_u32 s54, s54, s50'); A('s_sub_u32 s55, s66, s52'); A('s_nop 4')
    A('v_mov_b32 v0, s54'); A('v_mov_b32 v1, s55'); A('v_mov_b32 v8, 0'); A('s_mov_b64 exec, 1')
    A('buffer_store_dwordx2 v[0:1], v8, s[56:59], s62 offen'); A('s_waitcnt vmcnt(0)')
    o += ''.join('    ' + x + '\n' for x in L) + 'L_end:\n    s_endpgm\n'
    o += f'''.section .rodata,"a"
.p2align 6
.amdhsa_kernel {NAME}_kernel
  .amdhsa_next_free_vgpr 256
  .amdhsa_next_free_sgpr 72
  .amdhsa_accum_offset 256
  .amdhsa_group_segment_fixed_size 0
  .amdhsa_kernarg_size 48
  .amdhsa_user_sgpr_count 2
  .amdhsa_user_sgpr_kernarg_segment_ptr 1
  .amdhsa_system_sgpr_workgroup_id_x 1
.end_amdhsa_kernel
'''
    return o
for f in glob.glob('ub/*'): os.remove(f)
for path in sys.argv[1:]:
    open(f'pw_{os.path.basename(path)}', 'w').write(kern(body_of(path)))
```

```python
import re

_REG_RE = re.compile(r'^(-|abs\()?([vsa])(\d+)\)?$')
_RNG_RE = re.compile(r'^(-)?([vsa])\[(\d+):(\d+)\]$')


def regs_of(op):
    op = op.strip()
    m = _REG_RE.match(op)
    if m:
        return {(m.group(2), int(m.group(3)))}
    m = _RNG_RE.match(op)
    if m:
        return {(m.group(2), i) for i in range(int(m.group(3)), int(m.group(4)) + 1)}
    if op in ('m0', 'vcc', 'exec', 'scc'):
        return {(op, 0)}
    return set()


TRANS = ('v_exp_f32', 'v_log_f32', 'v_rcp_f32', 'v_rsq_f32', 'v_sqrt_f32', 'v_sin_f32', 'v_cos_f32')


class Inst:
    def __init__(self, text, comment=None):
        self.text = text
        self.comment = comment
        self.label = None
        self.reads = set()
        self.writes = set()
        self.kind = 'other'
        self.srcC = set()
        self.srcAB = set()
        self.ws = 1
        t = text.strip()
        if t.endswith(':'):
            self.kind = 'label'
            self.ws = 0
            return
        if t.startswith(';WAITFOR'):
            self.kind = 'waitfor'
            self.ws = 0
            self.reads = regs_of(t.split()[1])
            return
        if t.startswith(';') or t.startswith('.') or t == '':
            self.kind = 'directive'
            self.ws = 0
            return
        parts = t.split(None, 1)
        self.op = parts[0]
        rest = parts[1] if len(parts) > 1 else ''
        ops = [o.strip() for o in rest.split(',')] if rest else []
        fixed = []
        depth = 0
        cur = ''
        for ch in rest:
            if ch == '[':
                depth += 1
            if ch == ']':
                depth -= 1
            if ch == ',' and depth == 0:
                fixed.append(cur.strip())
                cur = ''
            else:
                cur += ch
        if cur.strip():
            fixed.append(cur.strip())
        ops = fixed
        mods = ''
        if ops:
            last = ops[-1].split(None, 1)
            ops[-1] = last[0]
            mods = last[1] if len(last) > 1 else ''
        self.ops = ops
        self.mods = mods
        op = self.op
        R = [regs_of(o) for o in ops]
        if op.startswith('v_mfma'):
            self.kind = 'mfma'
            self.writes = R[0]
            self.srcAB = R[1] | R[2]
            self.srcC = R[3]
            self.reads = R[1] | R[2] | R[3]
            self.passes = 4 if '16x16x32' in op else 8
        elif op.startswith('v_permlane'):
            self.kind = 'permlane'
            self.reads = R[0] | R[1]
            self.writes = R[0] | R[1]
        elif op.startswith('v_cmp'):
            self.kind = 'valu'
            self.writes = R[0]
            self.reads = set().union(*R[1:])
        elif op.startswith('v_readfirstlane') or op.startswith('v_readlane'):
            self.kind = 'readlane'
            self.writes = R[0]
            self.reads = set().union(*R[1:])
        elif op.startswith('v_'):
            self.kind = 'trans' if op.replace('_e32', '').replace('_e64', '') in TRANS else 'valu'
            self.writes = R[0]
            self.reads = set().union(*R[1:]) if len(R) > 1 else set()
            if op.startswith('v_add_co') or op.startswith('v_addc_co'):
                self.writes = R[0] | R[1]
                self.reads = set().union(*R[2:])
            if op.startswith('v_fmac') or op.startswith('v_pk_fmac'):
                self.reads |= R[0]
            if op.startswith('v_cndmask') and len(ops) == 3:
                self.reads |= {('vcc', 0)}
        elif op.startswith('ds_read'):
            self.kind = 'dsread'
            self.writes = R[0]
            self.reads = R[1]
        elif op.startswith('ds_write'):
            self.kind = 'dswrite'
            self.reads = set().union(*R)
        elif op.startswith('buffer_load'):
            if ' lds' in (' ' + mods):
                self.kind = 'dma'
                self.reads = set().union(*R) | {('m0', 0)}
            else:
                self.kind = 'vload'
                self.writes = R[0]
                self.reads = set().union(*R[1:])
        elif op.startswith('global_load'):
            self.kind = 'vload'
            self.writes = R[0]
            self.reads = set().union(*R[1:])
        elif op.startswith('buffer_store') or op.startswith('buffer_atomic'):
            self.kind = 'vstore'
            self.reads = set().union(*R)
            self.data = R[0]
            self.wide = ('x4' in op or 'x3' in op)
        elif op == 's_nop':
            self.kind = 'nop'
            self.ws = int(ops[0]) + 1
        elif op == 's_waitcnt':
            self.kind = 'wait'
        elif op.startswith('s_cbranch') or op == 's_branch':
            self.kind = 'branch'
            if 'vcc' in op:
                self.reads = {('vcc', 0)}
        elif op.startswith('s_cmp'):
            self.kind = 'salu'
            self.reads = set().union(*R)
            self.writes = {('scc', 0)}
        elif op.startswith('s_load') or op.startswith('s_memtime') or op.startswith('s_memrealtime'):
            self.kind = 'smem'
            self.writes = R[0]
            self.reads = set().union(*R[1:]) if len(R) > 1 else set()
        elif op.startswith('s_'):
            self.kind = 'salu'
            if ops:
                self.writes = R[0]
                self.reads = set().union(*R[1:]) if len(R) > 1 else set()

    def is_valu(self):
        return self.kind in ('valu', 'trans', 'permlane', 'readlane')


def vonly(s):
    return {r for r in s if r[0] in ('v', 'a')}


def sonly(s):
    return {r for r in s if r[0] in ('s', 'vcc')}


def needed_ws(p, c):
    n = 0
    if p.is_valu():
        pw = vonly(p.writes)
        if c.kind == 'mfma' and pw & c.reads:
            n = max(n, 2)
        if c.kind == 'permlane' and pw & c.reads:
            n = max(n, 2)
        if c.kind == 'readlane' and pw & c.reads:
            n = max(n, 1)
        if p.kind == 'trans' and c.is_valu() and c.kind != 'trans' and pw & c.reads:
            n = max(n, 1)
        if p.kind == 'trans' and c.kind == 'trans' and pw & c.reads:
            n = max(n, 1)
        ps = sonly(p.writes)
        if ps:
            if c.is_valu() and ps & c.reads:
                n = max(n, 2)
            if c.kind in ('dma', 'vload', 'vstore') and ps & c.reads:
                n = max(n, 5)
            if c.kind in ('salu', 'branch') and ps & c.reads:
                n = max(n, 4)
    if p.kind == 'mfma':
        big = {4: 8, 8: 12}[p.passes]
        ovl = {4: 6, 8: 10}[p.passes]
        war = {4: 3, 8: 7}[p.passes]
        D = p.writes
        if c.kind == 'mfma':
            if D & c.srcAB:
                n = max(n, big)
            if D & c.srcC:
                if c.srcC == D and c.passes == p.passes:
                    pass
                else:
                    n = max(n, ovl)
        elif c.is_valu():
            if D & (c.reads | c.writes):
                n = max(n, big)
            if p.srcC & c.writes:
                n = max(n, war)
        elif c.kind in ('dsread', 'dswrite', 'dma', 'vload', 'vstore'):
            if D & (c.reads | c.writes):
                n = max(n, big)
    if p.kind == 'salu' and ('m0', 0) in p.writes and c.kind == 'dma':
        n = max(n, 1)
    if p.kind == 'vstore' and p.wide:
        if c.is_valu() and p.data & c.writes:
            n = max(n, 2)
        elif (c.kind in ('dsread', 'vload', 'mfma')) and p.data & c.writes:
            n = max(n, 1)
    return n


class Prog:
    def __init__(self):
        self.ins = []

    def __call__(self, text, comment=None):
        for line in text.split('\n'):
            line = line.strip()
            if not line:
                continue
            self.ins.append(Inst(line, comment))

    def extend(self, insts):
        self.ins.extend(insts)

    def _lgkm(self, ins, pending, strict):
        out = []
        pending = list(pending)
        for i in ins:
            if i.kind == 'directive' and i.text.strip() == ';NOWAIT':
                pending = []
                continue
            if i.kind in ('label', 'branch'):
                if strict and pending:
                    raise RuntimeError('ds reads pending across label/branch: ' + i.text)
                out.append(i)
                continue
            if i.kind == 'wait' and 'lgkmcnt' in i.text:
                n = int(re.search(r'lgkmcnt\((\d+)\)', i.text).group(1))
                pending = pending[max(0, len(pending) - n):] if n > 0 else []
                out.append(i)
                continue
            if i.kind == 'salu' and i.op == 's_barrier' and strict and pending:
                raise RuntimeError('ds ops pending at barrier')
            touch = i.reads | i.writes
            last = -1
            for k, d in enumerate(pending):
                if d & touch:
                    last = k
            if last >= 0:
                n = len(pending) - 1 - last
                assert n <= 15
                out.append(Inst(f's_waitcnt lgkmcnt({n})'))
                pending = pending[last + 1:]
            if i.kind == 'waitfor':
                continue
            if i.kind == 'dsread':
                pending.append(frozenset(i.writes))
                assert len(pending) <= 15, 'too many outstanding ds ops'
            elif i.kind == 'dswrite':
                pending.append(frozenset())
                assert len(pending) <= 15
            out.append(i)
        return out, pending

    def insert_lgkm_waits(self):
        out = []
        k = 0
        ins = self.ins
        while k < len(ins):
            b = next((x for x in range(k, len(ins)) if ins[x].text.strip() == ';LOOP_BEGIN'), None)
            if b is None:
                o, pend = self._lgkm(ins[k:], [], True)
                out += o
                break
            o, pend = self._lgkm(ins[k:b], [], True)
            assert not pend
            out += o
            e = next(x for x in range(b, len(ins)) if ins[x].text.strip() == ';LOOP_END')
            body = ins[b:e + 1]
            _, end1 = self._lgkm(body, [], False)
            o, end2 = self._lgkm(body, end1, False)
            assert end1 == end2, 'loop pending state not steady'
            out += o
            k = e + 1
        self.ins = out

    def insert_nops(self):
        out = []
        nnop = 0
        for c in self.ins:
            if c.ws > 0 and c.kind not in ('nop',):
                need = 0
                dist = 0
                for p in reversed(out):
                    if dist >= 20:
                        break
                    if p.ws == 0:
                        continue
                    n = needed_ws(p, c)
                    if n - dist > need:
                        need = n - dist
                    dist += p.ws
                if need > 0:
                    out.append(Inst(f's_nop {need - 1}'))
                    nnop += need
            out.append(c)
        self.ins = out
        return nnop

    def check_edge(self, from_idx_pred, to_label):
        li = next(k for k, i in enumerate(self.ins) if i.kind == 'label' and i.text.strip() == to_label + ':')
        for bi, b in enumerate(self.ins):
            if b.kind == 'branch' and b.ops and b.ops[-1] == to_label:
                before = [x for x in self.ins[max(0, bi - 40):bi + 1] if x.ws > 0]
                after = [x for x in self.ins[li + 1:li + 41] if x.ws > 0]
                d_after = 0
                for c in after:
                    dist = d_after
                    for p in reversed(before):
                        if dist >= 20:
                            break
                        n = needed_ws(p, c)
                        if n > dist:
                            raise RuntimeError(f'hazard across branch to {to_label}: {p.text} -> {c.text} need {n} have {dist}')
                        dist += p.ws
                    d_after += c.ws
                    if d_after >= 20 or c.kind == 'branch' and c.op == 's_branch':
                        break

    def check_all_edges(self):
        for i in self.ins:
            if i.kind == 'label':
                self.check_edge(None, i.text.strip()[:-1])

    def render(self):
        lines = []
        for i in self.ins:
            if i.kind in ('label', 'directive'):
                lines.append(i.text)
            else:
                lines.append('    ' + i.text + (f'    ; {i.comment}' if i.comment else ''))
        return '\n'.join(lines) + '\n'

    def stats(self):
        from collections import Counter
        return Counter(i.kind for i in self.ins)


def v(i, n=1):
    return f'v{i}' if n == 1 else f'v[{i}:{i + n - 1}]'


def s(i, n=1):
    return f's{i}' if n == 1 else f's[{i}:{i + n - 1}]'


def a(i, n=1):
    return f'a{i}' if n == 1 else f'a[{i}:{i + n - 1}]'


def vcost(text):
    op = text.split()[0]
    if op in TRANS or op.startswith('v_permlane'):
        return 8
    if op.startswith('v_'):
        return 4
    return 0


def weave(mf, fill, lead=0):
    tot = sum(max(vcost(x), 1) for x in fill)
    out = []
    k = 0
    acc = 0
    n = len(mf)
    for i, slot in enumerate(mf):
        out += slot
        target = tot * (i + 1) / n
        while k < len(fill) and acc + max(vcost(fill[k]), 1) / 2 <= target:
            out.append(fill[k])
            acc += max(vcost(fill[k]), 1)
            k += 1
    out += fill[k:]
    return out


def weave2(mfmas, pinned, fill, free, nfill=None, start=0):
    n = len(mfmas)
    if nfill is None:
        nfill = n
    tot = sum(vcost(x) for x in fill)
    out = []
    k = 0
    acc = 0
    free = list(free)

    def take_free(gap):
        if free:
            f = free[0]
            if isinstance(f, tuple):
                if f[0] > gap:
                    return None
                free.pop(0)
                return f[1]
            free.pop(0)
            return f
        return None

    for i, m in enumerate(mfmas):
        out.append(m)
        pend = list(pinned.get(i, []))
        if pend:
            out.append(pend.pop(0))
        else:
            f = take_free(i)
            if f:
                out.append(f)
        if start <= i < nfill:
            target = tot * (i + 1 - start) / (nfill - start)
            while k < len(fill) and acc + vcost(fill[k]) / 2 <= target:
                x = fill[k]
                out.append(x)
                acc += vcost(x)
                k += 1
                if vcost(x) == 8:
                    if pend:
                        out.append(pend.pop(0))
                    else:
                        f = take_free(i)
                        if f:
                            out.append(f)
        out += pend
    assert k == len(fill), 'fill left over'
    for f in free:
        out.append(f[1] if isinstance(f, tuple) else f)
    return out


def weave3(mfmas, pinned, fill, free, nfill=None, dens=None, npre=0):
    n = len(mfmas)
    if nfill is None:
        nfill = n
    tot = sum(vcost(x) for x in fill)
    out = []
    k = 0
    acc = 0
    free = list(free)
    for i, m in enumerate(mfmas):
        out.append(m)
        pend = list(pinned.get(i, []))
        if pend:
            out += pend
        elif free:
            f = free[0]
            if not isinstance(f, tuple):
                out.append(free.pop(0))
            elif f[0] <= i:
                out.append(free.pop(0)[1])
        if i < nfill:
            target = tot * (i + 1) / nfill
            if dens is not None:
                target = min(target, dens * (i + 1))
                if k < npre:
                    target = max(target, 8 * (i + 1))
            while k < len(fill) and acc + vcost(fill[k]) / 2 <= target:
                out.append(fill[k])
                acc += vcost(fill[k])
                k += 1
    assert k == len(fill) or dens is not None, 'fill left over'
    out += fill[k:]
    if free:
        import sys
        sys.stderr.write(f'weave3: {len(free)} aux instructions did not fit in shadows\n')
    for f in free:
        out.append(f[1] if isinstance(f, tuple) else f)
    return out
```

```python
import sys, struct, math
sys.path.insert(0, 'work')
from asmgen import *

NAME = 'standalone__gqa_softmax__near_ridge'

def f32bits(x):
    return struct.unpack('<I', struct.pack('<f', x))[0]

def gen(opts):
    NWG = 256
    NH = 4
    LD_POL = opts.get('ldpol', ' nt')
    ST_POL = opts.get('stpol', '')
    QPOL = opts.get('qpol', LD_POL); KPOL = opts.get('kpol', LD_POL); VPOL = opts.get('vpol', LD_POL)
    NB = 8
    PD = opts.get('pd', 6)
    STAMP = opts.get('stamp', 0)
    NODMA = opts.get('nodma', 0)
    NOST = opts.get('nost', 0)
    THR = opts.get('thr', 8)
    BTAIL = opts.get('btail', 3)
    WEVERY = opts.get('wevery', 2)
    LAH = opts.get('lah', 3)
    PRIO = opts.get('prio', 1)
    ENC = opts.get('enc', 0)
    PROF = opts.get('prof', 0)
    PK = opts.get('pk', 0)
    DENSA = opts.get('densa', None); DENSB = opts.get('densb', None)
    AHEAD = opts.get('ahead', 9)
    STNOW = opts.get('stnow', 0)
    ADDS = opts.get('adds', 0)
    OPP = opts.get('opp', 0)
    LATE = opts.get('late', 0)
    FPG = opts.get('fpg', 2)
    OVL = opts.get('ovl', 0)
    CHAIN = opts.get('chain', 1)
    CPF = opts.get('cpf', 1)
    FASTB = opts.get('fastb', 1) and opts.get('densb', None) == 0
    HSLEEP = opts.get('hsleep', 2)
    sST, sRBN = 68, 69
    FAST0 = opts.get('fast0', 1) and opts.get('densa', None) == 0
    NF = opts.get('nf', 0)
    PAD = opts.get('pad', 0)
    TRACE = opts.get('trace', 0)
    TILE = 16384
    NSLOT = 9
    RING = NSLOT * TILE
    FLAGS = RING
    NITEM = 19 * NH + 4
    SPINMAX = 0x40000
    C = 128 ** -0.5 * math.log2(math.e)

    O0 = 0
    def O(T, e): return O0 + (T * 8 + e) * 4
    Q0 = 96
    def Q(T, s_): return Q0 + (T * 4 + s_) * 4
    S0 = 144
    def S(T, n, k=0): return S0 + T * 16 + n * 4 + k
    FB0 = 192
    def FB(b): return FB0 + b * 4
    LQ = [224, 226, 228]
    MX = [230, 231]
    TMP = [232, 233, 234, 235, 236, 237, 238, 239]
    KA = [240 + i for i in range(4)]; VA = [244 + i for i in range(8)]
    MC = [252, 253, 254]; LANE = 255

    SRD_Q, SRD_K, SRD_V, SRD_O = 8, 12, 16, 20
    (sW, sW4K, sRK, sRV, sDK, sDV, sA, sJ, sH, sC, sT0, sT1, sTHR, sNEED, sDN, sSPIN, sFLW) = \
        (3, 28, 29, 30, 31, 32, 33, 34, 35, 44, 45, 46, 47, 24, 25, 26, 27)
    sQS = [4, 5, 6]
    sNR = 56

    p = Prog()

    MF = 'v_mfma_f32_16x16x32_bf16'
    def kread(n, s_):
        return f'ds_read_b128 {v(FB(4*(n&1)+s_),4)}, {v(KA[s_])} offset:{n*1024}'
    def vread(e, hh):
        b = FB(2 * (e & 3) + hh)
        return [f'ds_read_b64_tr_b16 {v(b,2)}, {v(VA[e])} offset:{(2*hh)*1024}',
                f'ds_read_b64_tr_b16 {v(b+2,2)}, {v(VA[e])} offset:{(2*hh+1)*1024}']

    def phase(mf, waits, jobs, free, fill):
        out = []
        jobs = list(jobs); free = list(free); fill = list(fill)
        for i, m in enumerate(mf):
            out.append(m)
            if i in waits:
                out.append(waits[i])
            elif jobs and jobs[0][0] <= i:
                out.append(jobs.pop(0)[1])
            elif free:
                out.append(free.pop(0))
            k = 0
            while fill and fill[0][0] <= i and k < FPG:
                out.append(fill.pop(0)[1]); k += 1
        out += [j[1] for j in jobs] + free + [f[1] for f in fill]
        return out

    def step(ptr, dlt):
        return [f's_add_u32 {s(sT1)}, {s(ptr)}, {s(sA)}', f's_cmp_ge_u32 {s(sT1)}, {RING}', f's_cselect_b32 {s(sT1)}, {RING}, 0',
                f's_sub_u32 {s(dlt)}, {s(sA)}, {s(sT1)}', f's_add_u32 {s(ptr)}, {s(ptr)}, {s(dlt)}']

    def pbeg():
        if PROF:
            p('s_memtime s[72:73]')
    def pend_(acc):
        if PROF:
            p('s_memtime s[74:75]')
            p('s_waitcnt lgkmcnt(0)')
            p('s_sub_u32 s74, s74, s72')
            p(f's_add_u32 s{acc}, s{acc}, s74')
            if PROF == 1:
                p(f's_add_u32 s{acc+4}, s{acc+4}, 1')
            elif acc == 78:
                for k in range(1, 4):
                    p(f's_cmp_eq_u32 {s(sH)}, {k}')
                    p(f's_cselect_b32 s{79+k}, s74, s{79+k}')
    uid = [0]
    def poll_landed(fl, tmp):
        uid[0] += 1
        u = uid[0]
        p(f'v_mov_b32 {v(tmp)}, {FLAGS}')
        p(f'L_poll{u}:')
        p(f'ds_read_b128 {v(fl,4)}, {v(tmp)}')
        p('s_waitcnt lgkmcnt(0)')
        p(f'v_min3_u32 {v(fl)}, {v(fl)}, {v(fl+1)}, {v(fl+2)}')
        p(f'v_min_u32 {v(fl)}, {v(fl)}, {v(fl+3)}')
        p(f'v_cmp_gt_u32 vcc, {s(sNEED)}, {v(fl)}')
        p('s_nop 4')
        p(f's_cbranch_vccz L_polled{u}')
        p('s_sleep 1')
        p(f's_sub_u32 {s(sSPIN)}, {s(sSPIN)}, 1')
        p(f's_cbranch_scc0 L_poll{u}')
        p('s_branch L_end')
        p(f'L_polled{u}:')

    def done_write(t0, t1):
        return [f'v_mov_b32 {v(t0)}, {s(sFLW)}', f'v_mov_b32 {v(t1)}, {s(sDN)}'], f'ds_write_b32 {v(t0)}, {v(t1)}'

    def stamp_out(sidx):
        p('s_memrealtime s[52:53]')
        p('s_memtime s[54:55]')
        p('s_mov_b32 s64, s60\ns_and_b32 s65, s61, 0xffff\ns_mov_b32 s66, 0x100000\ns_mov_b32 s67, 0x20000')
        p(f's_lshl_b32 s62, s2, 7\ns_lshl_b32 s63, {s(sW)}, 5\ns_add_u32 s62, s62, s63')
        p(f's_add_u32 s62, s62, {sidx}')
        p('s_waitcnt lgkmcnt(0)')
        p('s_getreg_b32 s51, hwreg(HW_REG_XCC_ID)')
        p('s_getreg_b32 s55, hwreg(HW_REG_HW_ID)')
        for i in range(8):
            p(f'v_mov_b32 v{i}, s{48+i}')
        p('v_mov_b32 v8, 0\ns_mov_b64 exec, 1')
        p('buffer_store_dwordx4 v[0:3], v8, s[64:67], s62 offen')
        p('buffer_store_dwordx4 v[4:7], v8, s[64:67], s62 offen offset:16')
        if PROF and sidx:
            p('s_add_u32 s62, s62, 0x8000')
            p('s_sub_u32 s83, s54, s50')
            for i in range(8):
                p(f'v_mov_b32 v{10+i}, s{76+i}')
            p('buffer_store_dwordx4 v[10:13], v8, s[64:67], s62 offen')
            p('buffer_store_dwordx4 v[14:17], v8, s[64:67], s62 offen offset:16')
        p('s_waitcnt vmcnt(0)')

    p(f's_cmp_ge_u32 s2, {NWG}')
    p('s_cbranch_scc1 L_end')
    p('s_load_dwordx8 s[36:43], s[0:1], 0')
    if STAMP or ENC:
        p('s_memrealtime s[48:49]')
        p('s_memtime s[50:51]')
        p('s_load_dwordx2 s[60:61], s[0:1], 40')
    p('v_lshrrev_b32 v6, 6, v0', 'wave id')
    p(f'v_and_b32 {v(LANE)}, 63, v0', 'lane')
    p(f'v_readfirstlane_b32 {s(sT0)}, v6')
    p(f'v_lshrrev_b32 v1, 4, {v(LANE)}', 't = g = lane>>4')
    p(f'v_and_b32 v2, 15, {v(LANE)}', 'pos = rho = lane&15')
    p(f's_mov_b32 {s(sSPIN)}, {SPINMAX}')
    p(f's_and_b32 {s(sW)}, {s(sT0)}, 3')
    p(f's_lshl_b32 {s(sW4K)}, {s(sW)}, 12')
    p(f's_cmp_lt_u32 {s(sT0)}, 4')
    p('s_cbranch_scc1 L_compute')
    HV = 192
    VOFFK, VOFFV, VOFFO, FLA, FLV = HV, HV + 1, HV + 2, HV + 3, HV + 4
    QD = [HV + 8 + k for k in range(4)]
    RB = [HV + 12 + k for k in range(4)]
    RA = [HV + 16 + k for k in range(4)]
    DN = HV + 20
    sI, sL, sLIM, sPOS, sSLOT, sKo, sVo, sQo, sHI = 29, 30, 31, 32, 33, 34, 35, 44, 47
    w = 6
    p(f'v_and_b32 {v(w)}, 3, {v(w)}')
    p(f'v_lshl_add_u32 v3, {v(w)}, 4, v1', '16w+t')
    p(f'v_lshl_add_u32 v4, {v(w)}, 2, v1', '4w+t')
    p('v_xor_b32 v4, v4, v2')
    p('v_lshlrev_b32 v4, 4, v4')
    p(f'v_lshl_add_u32 {v(VOFFK)}, v3, 8, v4')
    p(f'v_and_b32 v4, 1, {v(w)}')
    p('v_lshlrev_b32 v4, 2, v4')
    p('v_add_u32 v4, v4, v1')
    p('v_lshlrev_b32 v4, 1, v4')
    p('v_xor_b32 v4, v4, v2')
    p('v_lshlrev_b32 v4, 4, v4')
    p(f'v_lshl_add_u32 {v(VOFFV)}, v3, 8, v4')
    p(f'v_mul_u32_u24 v5, 12288, {v(w)}')
    p('v_xor_b32 v4, v1, v2')
    p('v_lshlrev_b32 v4, 4, v4')
    p(f'v_lshl_add_u32 {v(RB[0])}, v1, 8, v4', 't*256 + ((pos^t)<<4)')
    for k in range(1, 4):
        p(f'v_xor_b32 {v(RB[k])}, {k*64}, {v(RB[0])}')
    for k in range(4):
        p(f'v_add_u32 {v(QD[k])}, {v(RB[k])}, v5')
    p(f'v_lshl_add_u32 {v(VOFFO)}, {v(LANE)}, 4, v5')
    p(f'v_mov_b32 {v(FLA)}, {FLAGS}')
    p(f's_lshl_b32 {s(sT1)}, {s(sW)}, 2')
    p(f's_add_u32 {s(sT1)}, {s(sT1)}, {FLAGS}')
    p(f'v_mov_b32 {v(FLV+1)}, {s(sT1)}', 'address of own LANDED word')
    p(f's_mul_i32 s5, s2, {NH*49152}')
    p(f's_mul_i32 s6, s2, {NH*131072}')
    for srd, nbytes in ((SRD_Q, NH * 49152), (SRD_K, NH * 131072), (SRD_V, NH * 131072), (SRD_O, NH * 49152)):
        z = (NODMA and srd in (SRD_K, SRD_V, SRD_Q)) or (NOST and srd == SRD_O)
        p(f's_mov_b32 {s(srd+2)}, {0 if z else nbytes}')
        p(f's_mov_b32 {s(srd+3)}, 0x20000')
    for r in (sI, sL, sPOS, sKo, sVo, sQo, sHI):
        p(f's_mov_b32 {s(r)}, 0')
    p(f's_mov_b32 {s(sSLOT)}, {s(sW4K)}', 'slot offset + own quarter')
    p(f's_mov_b32 {s(sLIM)}, {AHEAD}')
    p('s_waitcnt lgkmcnt(0)')
    for srd, src, off in ((SRD_Q, 36, 5), (SRD_K, 38, 6), (SRD_V, 40, 6), (SRD_O, 42, 5)):
        p(f's_add_u32 {s(srd)}, {s(src)}, s{off}')
        p(f's_addc_u32 {s(srd+1)}, {s(src+1)}, 0')
        p(f's_and_b32 {s(srd+1)}, {s(srd+1)}, 0xffff')
    p(f's_mov_b32 {s(sT0)}, 0', 'barrier not passed yet')

    for i in range(4):
        p(f's_add_u32 m0, {s(sW4K)}, {i*TILE}')
        if i < 3:
            p(f's_mov_b32 {s(sQo)}, {i*4096}')
            for n in range(4):
                p(f'buffer_load_dwordx4 {v(QD[n])}, {s(SRD_Q,4)}, {s(sQo)} offen offset:{n*1024}{QPOL} lds')
        else:
            for n in range(4):
                p(f'buffer_load_dwordx4 {v(VOFFK)}, {s(SRD_K,4)}, {s(sKo)} offen offset:{n*1024}{KPOL} lds')
    p(f's_mov_b32 {s(sQo)}, 49152')
    p(f's_mov_b32 {s(sKo)}, {TILE}')
    p(f's_mov_b32 {s(sST)}, 0')
    p(f's_mov_b32 {s(sRBN)}, 0')
    p(f's_mov_b32 {s(sI)}, 4')
    p(f's_mov_b32 {s(sPOS)}, 4')
    p(f's_add_u32 {s(sSLOT)}, {s(sW4K)}, {4*TILE}')
    p('s_branch H_loop')
    p('L_compute:')

    if CPF:
        p('s_getpc_b64 s[70:71]')
        p('L_pc:')
        p(f'v_lshl_add_u32 v8, {v(LANE)}, 6, {s(sW4K)}')
        p(f'v_min_u32 v8, L_codeend-{NAME}_kernel-4, v8')
        p(f's_sub_u32 s70, s70, L_pc-{NAME}_kernel')
        p('s_subb_u32 s71, s71, 0')
        p('v_mov_b32 v9, s71')
        p('v_add_co_u32 v8, vcc, s70, v8')
        p('v_addc_co_u32 v9, vcc, 0, v9, vcc')
        p('global_load_dword v20, v[8:9], off')
    if PRIO:
        p(f's_setprio {PRIO}')
    a_, b, c_, d, e_ = 1, 2, 3, 4, 5
    p(f'v_mov_b32 v10, {FLAGS}')
    for i in range(4):
        p(f'v_mov_b32 v{12+i}, 0')
    p('ds_write_b128 v10, v[12:15]')
    p('ds_write_b128 v10, v[12:15] offset:16')
    p(f'v_lshrrev_b32 {v(c_)}, 2, {v(b)}', 'rho>>2')
    p(f'v_and_b32 v6, 3, {v(b)}', 'rho&3')
    p(f'v_xor_b32 {v(d)}, {v(a_)}, {v(b)}')
    p(f'v_lshlrev_b32 {v(d)}, 4, {v(d)}')
    p(f'v_lshl_add_u32 {v(e_)}, v6, 8, {v(d)}')
    p(f'v_lshl_add_u32 {v(e_)}, {v(c_)}, 12, {v(e_)}')
    p(f'v_add_u32 {v(KA[0])}, {3*TILE}, {v(e_)}')
    for i in range(1, 4):
        p(f'v_xor_b32 {v(KA[i])}, {i*64}, {v(KA[0])}')
    p(f'v_and_b32 {v(e_)}, 1, {v(a_)}')
    p(f'v_lshl_add_u32 {v(e_)}, {v(e_)}, 2, {v(c_)}', '4(g&1)+r')
    p(f'v_lshlrev_b32 {v(e_)}, 5, {v(e_)}')
    p(f'v_lshl_add_u32 {v(e_)}, v6, 3, {v(e_)}')
    p(f'v_lshl_add_u32 {v(e_)}, {v(c_)}, 8, {v(e_)}')
    p(f'v_lshl_add_u32 {v(e_)}, {v(a_)}, 12, {v(e_)}')
    p(f'v_add_u32 {v(VA[0])}, {4*TILE}, {v(e_)}')
    for i in range(1, 8):
        p(f'v_xor_b32 {v(VA[i])}, {i*32}, {v(VA[0])}')
    p(f's_mov_b32 {s(sC)}, 0x{f32bits(C):08x}')
    p(f's_mov_b32 s7, {2*TILE}')
    p(f's_mov_b32 {s(sRK)}, {3*TILE}')
    p(f's_mov_b32 {s(sRV)}, {4*TILE}')
    p(f's_mov_b32 {s(sH)}, -1')
    p(f's_mov_b32 {s(sNEED)}, 4')
    p(f's_mov_b32 {s(sDN)}, 0')
    p(f's_lshl_b32 {s(sFLW)}, {s(sW)}, 2')
    p(f's_add_u32 {s(sFLW)}, {s(sFLW)}, {FLAGS+16}')
    p('s_waitcnt vmcnt(0) lgkmcnt(0)')
    p('s_barrier')
    poll_landed(S0, S0 + 4)
    p(f's_mov_b32 {s(sNEED)}, 6', 'items up to K1 for iteration 0')
    for n in range(2):
        for s_ in range(4):
            p(kread(n, s_))
    p(f's_mov_b64 {s(sNR,2)}, 1')
    if PROF:
        p('s_memtime s[72:73]')
        p('s_waitcnt lgkmcnt(0)')
        for k in range(76, 84):
            p(f's_mov_b32 s{k}, 0')
        p('s_sub_u32 s79, s72, s50')
    if ENC:
        p('s_memrealtime s[58:59]')
    p('s_waitcnt lgkmcnt(0)')
    p('s_branch L_boundary')

    p(';LOOP_BEGIN')
    p('.p2align 6')
    p('L_loop:')
    mf = []
    for n in range(4):
        order = [(T, s_) for T in range(3) for s_ in range(4)] if CHAIN else [(T, s_) for s_ in range(4) for T in range(3)]
        for T, s_ in order:
            mf.append(f'{MF} {v(S(T,n),4)}, {v(FB(4*(n&1)+s_),4)}, {v(Q(T,s_),4)}, ' + ('0' if s_ == 0 else v(S(T, n), 4)))
    lastk = (lambda s_: 9 + s_) if CHAIN else (lambda s_: 3 * s_ + 3)
    jobs = [(12 * n + lastk(s_), kread(n + 2, s_)) for n in range(2) for s_ in range(4)]
    for n in (2, 3):
        for s_ in range(4):
            b_ = 4 * (n & 1) + s_
            jobs += [(12 * n + lastk(s_), x) for x in vread(b_ // 2, b_ % 2)]
    waits = {12 * n - 1: f';WAITFOR {v(FB(4*(n&1)+3),4)}' for n in (1, 2, 3)}
    waits[45] = f';WAITFOR {v(FB(1),4)}'
    free_qk = [f's_cmp_eq_u32 {s(sJ)}, 7', f's_cselect_b32 {s(sA)}, {5*TILE}, s7'] + step(sRK, sDK) + step(sRV, sDV) + \
              [f's_cmp_eq_u32 {s(sJ)}, 6', f's_cselect_b32 {s(sT1)}, 5, 2', f's_add_u32 {s(sNEED)}, {s(sNEED)}, {s(sT1)}',
               f's_add_u32 {s(sDN)}, {s(sDN)}, 2', f's_add_u32 {s(sJ)}, {s(sJ)}, 1']
    ka = [f'v_add_u32 {v(KA[i])}, {s(sDK)}, {v(KA[i])}' for i in range(4)]
    def pkf(x, T):
        pr, sel = ((MC[0], 0), (MC[0], 1), (MC[2], 0))[T]
        return f'v_pk_fma_f32 {v(x,2)}, {v(x,2)}, {s(sC,2)}, {v(pr,2)} op_sel:[0,0,{sel}] op_sel_hi:[1,0,{sel}] neg_lo:[0,0,1] neg_hi:[0,0,1]'
    def scale(n):
        if PK:
            return [pkf(S(T, n, k), T) for T in range(3) for k in (0, 2)]
        return [f'v_fma_f32 {v(S(T,n,k))}, {v(S(T,n,k))}, {s(sC)}, -{v(MC[T])}' for T in range(3) for k in range(4)]
    def maxes(n, c, first):
        x = [S(T, n, k) for T in range(3) for k in range(4)]
        o = []
        if first:
            o.append(f'v_max3_f32 {v(MX[c])}, {v(x[0])}, {v(x[1])}, {v(x[2])}')
            x = x[3:]
            o.append(f'v_max_f32 {v(MX[c])}, {v(MX[c])}, {v(x[0])}')
            x = x[1:]
        for k in range(0, len(x), 2):
            o.append(f'v_max3_f32 {v(MX[c])}, {v(MX[c])}, {v(x[k])}, {v(x[k+1])}')
        return o
    fill_qk = [(30, x) for x in ka]
    pre = []
    for n in range(4):
        sc = scale(n) + maxes(n, n & 1, n < 2)
        if n < OVL and not PK:
            fill_qk += [(12 * n + 12 + 6, x) for x in sc]
        else:
            pre.append(sc)
    fill_qk.sort(key=lambda t: t[0])
    for x in phase(mf, waits, jobs, free_qk, fill_qk): p(x)
    for sc in pre:
        for x in sc: p(x)
    p(f'v_max_f32 {v(MX[0])}, {v(MX[0])}, {v(MX[1])}')
    p(f'v_cmp_lt_f32 vcc, {s(sTHR)}, {v(MX[0])}')
    p('s_cbranch_vccnz L_rare')
    p('L_ret:')
    pend = []
    late = []
    for hh in range(2):
        for q in range(4):
            for T in range(3):
                x = S(T, 2 * hh) + 2 * q
                p(f'v_exp_f32 {v(x)}, {v(x)}')
                p(f'v_exp_f32 {v(x+1)}, {v(x+1)}')
                for y in pend: p(y)
                if ADDS == 2:
                    ad = [f'v_pk_add_f32 {v(LQ[T],2)}, {v(LQ[T],2)}, {v(x,2)}']
                else:
                    ad = [f'v_add_f32 {v(LQ[T])}, {v(LQ[T])}, {v(x)}', f'v_add_f32 {v(LQ[T]+1)}, {v(LQ[T]+1)}, {v(x+1)}']
                if q >= 2 and LATE and ADDS != 2:
                    late += ad; ad = []
                pend = ad + [f'v_cvt_pk_bf16_f32 {v(S(T,2*hh)+q)}, {v(x)}, {v(x+1)}']
    for y in pend: p(y)
    mf = []
    for e in range(8):
        order = [(T, hh) for T in range(3) for hh in range(2)] if CHAIN else [(T, hh) for hh in range(2) for T in range(3)]
        for T, hh in order:
            mf.append(f'{MF} {v(O(T,e),4)}, {v(FB(2*(e&3)+hh),4)}, {v(S(T,2*hh),4)}, {v(O(T,e),4)}')
    lastv = (lambda hh: 5 + hh) if CHAIN else (lambda hh: 3 * hh + 3)
    jobs = []
    FL = TMP[0]; t0, t1, t2 = TMP[4], TMP[5], TMP[6]
    dwv, dw = done_write(t0, t1)
    for e in range(4):
        for hh in range(2):
            jobs += [(6 * e + lastv(hh), x) for x in vread(e + 4, hh)]
    jobs.append((24, dw))
    jobs.append((24, f'ds_read_b128 {v(FL,4)}, {v(t2)}'))
    for e in range(4, 8):
        for hh in range(2):
            b_ = 2 * (e & 3) + hh
            jobs.append((6 * e + lastv(hh), kread(b_ >> 2, b_ & 3)))
    waits = {6 * e - 1: f';WAITFOR {v(FB(2*(e&3)+1),4)}' for e in range(1, 8)}
    waits[40] = f';WAITFOR {v(FL,4)}'
    va = [f'v_add_u32 {v(VA[i])}, {s(sDV)}, {v(VA[i])}' for i in range(8)]
    fill_pv = [(0, x) for x in dwv + [f'v_mov_b32 {v(t2)}, {FLAGS}'] + va[:4]] + [(2, x) for x in late] + [(32, x) for x in va[4:]] + \
              [(41, f'v_min3_u32 {v(FL)}, {v(FL)}, {v(FL+1)}, {v(FL+2)}'), (41, f'v_min_u32 {v(FL)}, {v(FL)}, {v(FL+3)}'),
               (42, f'v_cmp_gt_u32 {s(sNR,2)}, {s(sNEED)}, {v(FL)}')]
    for x in phase(mf, waits, jobs, [f's_cmp_eq_u32 {s(sJ)}, 8'], fill_pv): p(x)
    for i in range(PAD): p('s_nop 15')
    p('s_cbranch_scc1 L_boundary')
    p('L_next:')
    p(f's_cmp_eq_u64 {s(sNR,2)}, 0')
    p('s_cbranch_scc1 L_loop')
    p(';LOOP_END')
    p('L_wait:')
    pbeg()
    poll_landed(TMP[0], TMP[4])
    pend_(76)
    p('s_branch L_loop')

    p('L_boundary:')
    pbeg()
    t = S0
    assert all((19 * h) % NSLOT + 3 < NSLOT for h in range(NH + 1))
    p(f's_sub_u32 {s(sQS[0])}, {s(sRK)}, {3*TILE}')
    p(f's_add_u32 {s(sQS[0])}, {s(sQS[0])}, {s(sW4K)}')
    p(f'v_and_b32 {v(t+8)}, 15, {v(LANE)}')
    p(f'v_lshrrev_b32 {v(t+1)}, 4, {v(LANE)}')
    p(f'v_xor_b32 {v(t+1)}, {v(t+1)}, {v(t+8)}')
    p(f'v_lshlrev_b32 {v(t+1)}, 4, {v(t+1)}')
    p(f'v_lshl_add_u32 {v(t+9)}, {v(t+8)}, 8, {s(sQS[0])}', 'slot + rho*256')
    p(f'v_add_u32 {v(t)}, {v(t+9)}, {v(t+1)}')
    for k in range(1, 4):
        p(f'v_xor_b32 {v(t+k)}, {k*64}, {v(t)}')
    p('s_waitcnt lgkmcnt(2)')
    for T in range(3):
        for s_ in range(4):
            p(f'ds_read_b128 {v(Q(T,s_),4)}, {v(t+s_)} offset:{T*TILE}')
    p(f's_cmp_lt_i32 {s(sH)}, 0')
    p(';NOWAIT')
    p('s_cbranch_scc1 L_first')
    TM = [t + 10, t + 12, t + 14]
    W = [t + 16 + e for e in range(8)]
    p(f'v_lshrrev_b32 {v(t+4)}, 5, {v(LANE)}', 'g>>1')
    p(f'v_xor_b32 {v(t+4)}, {v(t+4)}, {v(t+8)}')
    p(f'v_lshl_add_u32 {v(t+9)}, {v(t+4)}, 4, {v(t+9)}')
    p(f'v_bfe_u32 {v(t+4)}, {v(LANE)}, 4, 1')
    p(f'v_lshl_add_u32 {v(W[0])}, {v(t+4)}, 3, {v(t+9)}', 'slot + rho*256 + (((g>>1)^rho)<<4) + (g&1)*8')
    for e in range(1, 8):
        p(f'v_xor_b32 {v(W[e])}, {e*32}, {v(W[0])}')
    for T in range(3):
        p(f'v_add_f32 {v(LQ[T])}, {v(LQ[T])}, {v(LQ[T]+1)}')
    for op in ('v_permlane16_swap_b32', 'v_permlane32_swap_b32'):
        for T in range(3):
            p(f'v_mov_b32 {v(TM[T])}, {v(LQ[T])}')
        for T in range(3):
            p(f'{op} {v(LQ[T])}, {v(TM[T])}')
        for T in range(3):
            p(f'v_add_f32 {v(LQ[T])}, {v(LQ[T])}, {v(TM[T])}')
    for T in range(3):
        p(f'v_rcp_f32 {v(TM[T])}, {v(LQ[T])}')
    for T in range(3):
        for e in range(8):
            r = O(T, e)
            for i in range(2):
                p(f'v_pk_mul_f32 {v(r+2*i,2)}, {v(r+2*i,2)}, {v(TM[T],2)} op_sel_hi:[1,0]')
        p(f's_waitcnt lgkmcnt({0 if T == 0 else 4})', 'T=0: Q has been read out of the slots')
        for e in range(8):
            r = O(T, e)
            p(f'v_cvt_pk_bf16_f32 {v(r)}, {v(r)}, {v(r+1)}')
            p(f'v_cvt_pk_bf16_f32 {v(r+1)}, {v(r+2)}, {v(r+3)}')
            if e > 0:
                p(f'ds_write_b64 {v(W[e-1])}, {v(O(T,e-1),2)} offset:{T*TILE}')
        p(f's_add_u32 {s(sDN)}, {s(sDN)}, 1')
        p(f'ds_write_b64 {v(W[7])}, {v(O(T,7),2)} offset:{T*TILE}')
        dwv, dw = done_write(t + 24, t + 25)
        for x in dwv: p(x)
        p(dw)
    p(f's_cmp_eq_u32 {s(sH)}, {NH-1}')
    p(';NOWAIT')
    p('s_cbranch_scc1 L_cend')
    p('L_newhead:')
    for T in range(3):
        p(f'v_mov_b32 {v(MC[T])}, 0')
        p(f'v_mov_b64 {v(LQ[T],2)}, 0')
    p(f's_mov_b32 {s(sTHR)}, 0xff800000', 'first tile of a head always takes the true-max path')
    p(f's_add_u32 {s(sH)}, {s(sH)}, 1')
    p(f's_mov_b32 {s(sJ)}, 0')
    p('s_waitcnt lgkmcnt(0)')
    for i in range(48):
        p(f'v_mov_b64 {v(O0+2*i,2)}, 0')
    pend_(78)
    p('s_branch L_next')
    p('L_first:')
    p('s_waitcnt lgkmcnt(0)')
    p(f's_mov_b32 {s(sDN)}, 3')
    dwv, dw = done_write(t + 24, t + 25)
    for x in dwv: p(x)
    p(dw)
    p(';NOWAIT')
    p('s_branch L_newhead')

    p('L_rare:')
    D = TMP[0:3]; TM = TMP[4:7]
    for T in range(3):
        p(f'v_max3_f32 {v(D[T])}, {v(S(T,0))}, {v(S(T,0)+1)}, {v(S(T,0)+2)}')
    for k in range(3, 15, 2):
        for T in range(3):
            p(f'v_max3_f32 {v(D[T])}, {v(D[T])}, {v(S(T,0)+k)}, {v(S(T,0)+k+1)}')
    for T in range(3):
        p(f'v_max_f32 {v(D[T])}, {v(D[T])}, {v(S(T,0)+15)}')
    for op in ('v_permlane16_swap_b32', 'v_permlane32_swap_b32'):
        for T in range(3):
            p(f'v_mov_b32 {v(TM[T])}, {v(D[T])}')
        for T in range(3):
            p(f'{op} {v(D[T])}, {v(TM[T])}')
        for T in range(3):
            p(f'v_max_f32 {v(D[T])}, {v(D[T])}, {v(TM[T])}')
    p(f's_cmp_eq_u32 {s(sJ)}, 1', 'first tile: nothing accumulated yet')
    p('s_cbranch_scc1 L_shift')
    for T in range(3):
        p(f'v_max_f32 {v(D[T])}, 0, {v(D[T])}')
    for T in range(3):
        p(f'v_exp_f32 {v(TM[T])}, -{v(D[T])}')
    for T in range(3):
        for i in range(32):
            p(f'v_mul_f32 {v(O(T,0)+i)}, {v(O(T,0)+i)}, {v(TM[T])}')
        p(f'v_mul_f32 {v(LQ[T])}, {v(LQ[T])}, {v(TM[T])}')
        p(f'v_mul_f32 {v(LQ[T]+1)}, {v(LQ[T]+1)}, {v(TM[T])}')
    p('L_shift:')
    p(f's_mov_b32 {s(sTHR)}, 0x{f32bits(THR):08x}')
    for T in range(3):
        for k in range(16):
            p(f'v_sub_f32 {v(S(T,0)+k)}, {v(S(T,0)+k)}, {v(D[T])}')
        p(f'v_add_f32 {v(MC[T])}, {v(MC[T])}, {v(D[T])}')
    p('s_branch L_ret')

    p('L_cend:')
    p('s_waitcnt lgkmcnt(0)')
    if STAMP:
        stamp_out(0x8000)
    if ENC in (3, 4):
        enc_tail(p, opts, sW, ENC)
    p('s_endpgm')

    def poll_done():
        p(f'ds_read_b128 {v(DN,4)}, {v(FLA)} offset:16')
        p('s_waitcnt lgkmcnt(0)')
        p(f'v_min3_u32 {v(DN)}, {v(DN)}, {v(DN+1)}, {v(DN+2)}')
        p(f'v_min_u32 {v(DN)}, {v(DN)}, {v(DN+3)}')
        p(f'v_readfirstlane_b32 {s(sLIM)}, {v(DN)}')

    def hstores(q0, q1):
        for q in range(q0, q1):
            h, T = divmod(q, 3)
            p(f's_mov_b32 {s(sT1)}, {h*49152 + T*4096}')
            for n in range(4):
                p(f'buffer_store_dwordx4 {v(q*16 + n*4, 4)}, {v(VOFFO)}, {s(SRD_O,4)}, {s(sT1)} offen offset:{n*1024}{ST_POL}')
    p('H_loop:')
    p(f's_sub_u32 {s(sT1)}, {s(sI)}, {s(sL)}')
    p(f's_cmp_ge_u32 {s(sT1)}, {LAH}')
    p('s_cbranch_scc1 H_waitold')
    p(f's_cmp_ge_u32 {s(sI)}, {NITEM}')
    p('s_cbranch_scc1 H_blocked')
    p(f's_cmp_lt_u32 {s(sI)}, {s(sLIM)}')
    p('s_cbranch_scc1 H_issue')
    poll_done()
    p(f's_add_u32 {s(sLIM)}, {s(sLIM)}, {AHEAD}')
    p(f's_cmp_lt_u32 {s(sI)}, {s(sLIM)}')
    p('s_cbranch_scc0 H_blocked')
    p('H_issue:')
    p(f's_cmp_lt_u32 {s(sI)}, {NITEM-4}')
    p('s_cbranch_scc1 H_real')
    p(f's_sub_u32 {s(sT1)}, {s(sI)}, {s(sL)}')
    p(f's_cmp_gt_u32 {s(sT1)}, 0')
    p('s_cbranch_scc1 H_waitold')
    p(f's_add_u32 {s(sI)}, {s(sI)}, 1')
    p('s_branch H_pub')
    p('H_real:')
    p(f's_sub_u32 {s(sT1)}, {s(sPOS)}, 9')
    p(f's_cmp_lt_u32 {s(sT1)}, 3')
    p('s_cbranch_scc0 H_norb')
    p(f's_cmp_eq_u32 {s(sHI)}, 0')
    p('s_cbranch_scc1 H_norb')
    for k in range(4):
        p(f'v_add_u32 {v(RA[k])}, {s(sSLOT)}, {v(RB[k])}')
    p(f's_add_u32 {s(sRBN)}, {s(sRBN)}, 1')
    p(f's_mul_i32 s7, {s(sHI)}, 3')
    p(f's_add_u32 {s(sT1)}, {s(sT1)}, s7', '3*hi + T  in 3..11')
    for q in range(9):
        if q < 8:
            p(f's_cmp_lg_u32 {s(sT1)}, {q+3}')
            p(f's_cbranch_scc1 H_rb{q+1}')
        for n in range(4):
            p(f'ds_read_b128 {v(q*16 + n*4, 4)}, {v(RA[n])} offset:{n*1024}')
        p('s_waitcnt lgkmcnt(0)')
        if q // 3 < STNOW:
            hstores(q, q + 1)
        if q < 8:
            p('s_branch H_norb')
            p(f'H_rb{q+1}:')
    p('H_norb:')
    p(f's_mov_b32 m0, {s(sSLOT)}')
    p(f's_cmp_lt_u32 {s(sPOS)}, 3')
    p('s_cbranch_scc1 H_q')
    p(f's_bitcmp1_b32 {s(sPOS)}, 0')
    p('s_cbranch_scc0 H_v')
    for n in range(4):
        if NF: p(f's_waitcnt vmcnt({NF-1})')
        p(f'buffer_load_dwordx4 {v(VOFFK)}, {s(SRD_K,4)}, {s(sKo)} offen offset:{n*1024}{KPOL} lds')
    p(f's_add_u32 {s(sKo)}, {s(sKo)}, {TILE}')
    p('s_branch H_issued')
    p('H_v:')
    for n in range(4):
        if NF: p(f's_waitcnt vmcnt({NF-1})')
        p(f'buffer_load_dwordx4 {v(VOFFV)}, {s(SRD_V,4)}, {s(sVo)} offen offset:{n*1024}{VPOL} lds')
    p(f's_add_u32 {s(sVo)}, {s(sVo)}, {TILE}')
    p('s_branch H_issued')
    p('H_q:')
    for n in range(4):
        if NF: p(f's_waitcnt vmcnt({NF-1})')
        p(f'buffer_load_dwordx4 {v(QD[n])}, {s(SRD_Q,4)}, {s(sQo)} offen offset:{n*1024}{QPOL} lds')
    p(f's_cmp_eq_u32 {s(sPOS)}, 2')
    p(f's_cselect_b32 {s(sT1)}, {49152-8192-4096}, 0')
    p(f's_add_u32 {s(sQo)}, {s(sQo)}, 4096')
    p(f's_add_u32 {s(sQo)}, {s(sQo)}, {s(sT1)}')
    p('H_issued:')
    p(f's_add_u32 {s(sI)}, {s(sI)}, 1')
    p(f's_add_u32 {s(sPOS)}, {s(sPOS)}, 1')
    p(f's_cmp_eq_u32 {s(sPOS)}, 19')
    p(f's_cselect_b32 {s(sPOS)}, 0, {s(sPOS)}')
    p(f's_addc_u32 {s(sHI)}, {s(sHI)}, 0')
    p(f's_add_u32 {s(sSLOT)}, {s(sSLOT)}, {TILE}')
    p(f's_sub_u32 {s(sT1)}, {s(sSLOT)}, {RING}')
    p(f's_min_u32 {s(sSLOT)}, {s(sSLOT)}, {s(sT1)}')
    p('s_branch H_loop')
    p('H_blocked:')
    p(f's_sub_u32 {s(sT1)}, {s(sI)}, {s(sL)}')
    p(f's_cmp_gt_u32 {s(sT1)}, 0')
    p('s_cbranch_scc1 H_waitold')
    if OPP:
        if OPP >= 2:
            p(f's_cmp_lt_u32 {s(sI)}, {NITEM - 4 - (OPP - 2)}')
            p('s_cbranch_scc1 H_nap')
        p(f's_cmp_lt_u32 {s(sST)}, {s(sRBN)}')
        p('s_cbranch_scc1 H_opp')
    p(f's_cmp_ge_u32 {s(sI)}, {NITEM}')
    p('s_cbranch_scc1 H_stores')
    p('H_nap:')
    p(f's_sleep {HSLEEP}')
    p(f's_sub_u32 {s(sSPIN)}, {s(sSPIN)}, 1')
    p('s_cbranch_scc0 H_loop')
    p('s_branch L_end')
    p('H_waitold:')
    for k in range(max(LAH, 4), 0, -1):
        if k > 1:
            p(f's_cmp_lt_u32 {s(sT1)}, {k}')
            p(f's_cbranch_scc1 H_wo{k-1}')
        p(f's_waitcnt vmcnt({4*(k-1)})')
        if k > 1:
            p('s_branch H_pub')
            p(f'H_wo{k-1}:')
    p('H_pub:')
    p(f's_add_u32 {s(sL)}, {s(sL)}, 1')
    p(f's_cmp_lg_u32 {s(sT0)}, 0')
    p('s_cbranch_scc1 H_pub2')
    p('s_barrier', 'flags have been cleared')
    p(f's_mov_b32 {s(sT0)}, 1')
    p('H_pub2:')
    if ENC == 6:
        p(f's_cmp_lg_u32 {s(sL)}, {opts["item"]}')
        p('s_cbranch_scc1 H_e6')
        p('s_memrealtime s[58:59]')
        p('s_waitcnt lgkmcnt(0)')
        p('H_e6:')
    if TRACE:
        p('s_memrealtime s[72:73]')
        p('s_waitcnt lgkmcnt(0)')
        p('s_sub_u32 s72, s72, s48')
        p(f's_and_b32 m0, {s(sL)}, 63')
        p(f's_cmp_ge_u32 {s(sL)}, 64')
        p('s_cbranch_scc1 H_tr2')
        p('v_writelane_b32 v230, s72, m0')
        p('s_branch H_tr3')
        p('H_tr2:')
        p('v_writelane_b32 v231, s72, m0')
        p('H_tr3:')
    p(f'v_mov_b32 {v(FLV)}, {s(sL)}')
    p(f'ds_write_b32 {v(FLV+1)}, {v(FLV)}')
    p(';NOWAIT')
    p('s_branch H_loop')

    if OPP:
        p('H_opp:')
        p(f's_add_u32 {s(sST)}, {s(sST)}, 1')
        for q in range(9):
            if q < 8:
                p(f's_cmp_lg_u32 {s(sST)}, {q+1}')
                p(f's_cbranch_scc1 H_opp{q+1}')
            hstores(q, q + 1)
            p('s_branch H_loop')
            if q < 8:
                p(f'H_opp{q+1}:')
    p('H_stores:')
    if not OPP:
        hstores(3 * STNOW, 9)
    p(f'v_add_u32 {v(FLV)}, 16, {v(FLV+1)}', 'own DONE word')
    for T in range(3):
        slot = ((NITEM - 4 + T) % NSLOT) * TILE
        p(f's_add_u32 {s(sT1)}, {s(sW4K)}, {slot}')
        for k in range(4):
            p(f'v_add_u32 {v(RA[k])}, {s(sT1)}, {v(RB[k])}')
        p(f'H_last{T}:')
        p(f'ds_read_b32 {v(DN)}, {v(FLV)}')
        p('s_waitcnt lgkmcnt(0)')
        p(f'v_readfirstlane_b32 {s(sLIM)}, {v(DN)}')
        p(f's_cmp_ge_u32 {s(sLIM)}, {NITEM-3+T}')
        p(f's_cbranch_scc1 H_fin{T}')
        p('s_sleep 1')
        p(f's_sub_u32 {s(sSPIN)}, {s(sSPIN)}, 1')
        p(f's_cbranch_scc0 H_last{T}')
        p('s_branch L_end')
        p(f'H_fin{T}:')
        for n in range(4):
            p(f'ds_read_b128 {v((9+T)*16 + n*4, 4)}, {v(RA[n])} offset:{n*1024}')
        hstores(9 + T, 10 + T)
    p('s_waitcnt vmcnt(0)')
    if TRACE:
        p('s_mov_b32 s64, s60\ns_and_b32 s65, s61, 0xffff\ns_mov_b32 s66, 0x400000\ns_mov_b32 s67, 0x20000')
        p(f's_lshl_b32 s62, s2, 11\ns_lshl_b32 s63, {s(sW)}, 9\ns_add_u32 s62, s62, s63\ns_add_u32 s62, s62, 0x20000')
        p(f'v_lshlrev_b32 v232, 2, {v(LANE)}')
        p('buffer_store_dword v230, v232, s[64:67], s62 offen')
        p('buffer_store_dword v231, v232, s[64:67], s62 offen offset:256')
        p('s_waitcnt vmcnt(0)')
    if STAMP:
        stamp_out(0)
    if ENC == 5:
        p('s_load_dwordx2 s[60:61], s[0:1], 32')
        p('s_memrealtime s[52:53]')
        p('s_waitcnt lgkmcnt(0)')
        p(f's_cmp_lg_u32 {s(sW)}, 0')
        p('s_cbranch_scc1 L_end')
        p('s_mov_b32 s64, s60\ns_and_b32 s65, s61, 0xffff\ns_mov_b32 s66, 256\ns_mov_b32 s67, 0x20000')
        p('v_mov_b32 v0, s52\nv_mov_b32 v1, 1\nv_mov_b32 v8, 0\ns_mov_b64 exec, 1')
        p('buffer_atomic_umax v0, v8, s[64:67], 0 offen')
        p('s_waitcnt vmcnt(0)')
        p('buffer_atomic_add v1, v8, s[64:67], 0 offen offset:128')
        p('s_waitcnt vmcnt(0)')
        p('s_cmp_lg_u32 s2, 0')
        p('s_cbranch_scc1 L_end')
        p('s_mov_b32 s70, 200000')
        p('L_e5:')
        p('s_sleep 64')
        p('buffer_load_dword v2, v8, s[64:67], 0 offen offset:128 sc0 sc1')
        p('s_waitcnt vmcnt(0)')
        p('v_readfirstlane_b32 s69, v2')
        p('s_sub_u32 s70, s70, 1')
        p('s_cbranch_scc1 L_end')
        p('s_cmp_lt_u32 s69, 256')
        p('s_cbranch_scc1 L_e5')
        p('buffer_load_dword v2, v8, s[64:67], 0 offen sc0 sc1')
        p('s_waitcnt vmcnt(0)')
        p('v_readfirstlane_b32 s58, v2')
        enc_tail(p, opts, sW, 4)
    if ENC == 6:
        enc_tail(p, opts, sW, 4)
    if ENC in (1, 2):
        enc_tail(p, opts, sW, ENC)
    p('L_end:')
    p('s_endpgm')
    p('L_codeend:')

    body = p.ins
    b0 = next(k for k, i in enumerate(body) if i.text.strip() == ';LOOP_BEGIN')
    b1 = next(k for k, i in enumerate(body) if i.text.strip() == ';LOOP_END')
    for r in VA:
        ev = ['w' if (('v', r) in i.writes) else 'r' for i in body[b0:b1] if ('v', r) in i.writes or (i.kind == 'dsread' and ('v', r) in i.reads)]
        assert ev == ['r'] * 4 + ['w'], (r, ev)
    for k, r in enumerate(KA):
        ev = [('w' if (('v', r) in i.writes) else i.mods) for i in body[b0:b1] if ('v', r) in i.writes or (i.kind == 'dsread' and ('v', r) in i.reads)]
        assert ev == ['offset:2048', 'offset:3072', 'w', 'offset:0', 'offset:1024'], (r, ev)
    wK = next(k for k in range(b0, b1) if ('s', sDK) in body[k].writes); rK = next(k for k in range(b0, b1) if ('v', KA[0]) in body[k].writes)
    assert wK < rK
    lastv = max(k for k in range(b0, b1) if body[k].text.startswith('ds_read_b64_tr'))
    dwi = next(k for k in range(b0, b1) if body[k].kind == 'dswrite')
    assert dwi > lastv
    fr = next(k for k in range(b0, b1) if body[k].kind == 'dsread' and ('v', FL) in body[k].writes)
    fu = next(k for k in range(b0, b1) if body[k].text.startswith('v_min3_u32'))
    assert fr < fu, 'flag read must precede its use'

    p.insert_lgkm_waits()
    nn = p.insert_nops()
    p.check_all_edges()
    sys.stderr.write(f'nop-states={nn} stats={dict(p.stats())}\n')

    head = open('cdna_kernels/' + NAME + '.s.ref').read().split('; Override launch')[0]
    out = head
    out += f'; @launch grid=({NWG},1,1) block=(512,1,1) lds={RING + 256}\n'
    out += f'''.amdgcn_target "amdgcn-amd-amdhsa--gfx950"
.text
.globl {NAME}_kernel
.p2align 8
.type {NAME}_kernel,@function
{NAME}_kernel:
'''
    out += p.render()
    out += f'''.section .rodata,"a"
.p2align 6
.amdhsa_kernel {NAME}_kernel
  .amdhsa_next_free_vgpr 256
  .amdhsa_next_free_sgpr 88
  .amdhsa_accum_offset 256
  .amdhsa_group_segment_fixed_size 0
  .amdhsa_kernarg_size 48
  .amdhsa_user_sgpr_count 2
  .amdhsa_user_sgpr_kernarg_segment_ptr 1
  .amdhsa_system_sgpr_workgroup_id_x 1
.end_amdhsa_kernel
'''
    return out

def enc_tail(p, opts, sW, ENC):
    p('s_memrealtime s[52:53]')
    p('s_memtime s[54:55]')
    p('s_waitcnt lgkmcnt(0)')
    p(f's_cmp_lg_u32 s{sW}, 0')
    p('s_cbranch_scc1 L_end')
    p(f's_cmp_lg_u32 s2, {opts.get("encwg", 0)}')
    p('s_cbranch_scc1 L_end')
    if ENC in (1, 3):
        p('s_sub_u32 s62, s52, s48'); p('s_mul_i32 s62, s62, 10')
    elif ENC == 2:
        p('s_sub_u32 s62, s54, s50'); p('s_lshr_b32 s62, s62, 1')
    elif ENC == 4:
        p('s_sub_u32 s62, s58, s48'); p(f's_mul_i32 s62, s62, {opts.get("amp", 10)}')
    p(f's_add_u32 s62, s62, {opts.get("base", 30000)}')
    p('L_spin:')
    p('s_sleep 8')
    p('s_memrealtime s[52:53]')
    p('s_waitcnt lgkmcnt(0)')
    p('s_sub_u32 s63, s52, s48')
    p('s_cmp_lt_u32 s63, s62')
    p('s_cbranch_scc1 L_spin')

if __name__ == '__main__':
    opts = {}
    outp = 'cdna_kernels/' + NAME + '.s'
    for x in sys.argv[1:]:
        k, val = x.split('=', 1)
        if k == 'out':
            outp = val
        elif k in ('ldpol', 'stpol', 'qpol', 'kpol', 'vpol'):
            opts[k] = (' ' + val.replace('+', ' ')) if val else ''
        elif k == 'thr':
            opts[k] = float(val)
        else:
            opts[k] = int(val)
    open(outp, 'w').write(gen(opts))
```
